```python
import torch

def _softmax(x, axis=-1):
    return torch.softmax(x, dim=axis)
def _gelu(x):
    return torch.nn.functional.gelu(x, approximate="tanh")
def _silu(x):
    return torch.nn.functional.silu(x)
def _sigmoid(x):
    return torch.sigmoid(x)
def _layernorm(x, axis=-1, eps=1e-5):
    m = x.mean(dim=axis, keepdim=True)
    v = x.var(dim=axis, keepdim=True, unbiased=False)
    return (x - m) / torch.sqrt(v + eps)
def _scatter_add(tgt, idx, src, axis=0):
    return tgt.clone().index_add_(axis, idx, src)
def _segment_sum(src, seg, n):
    out = torch.zeros((n,) + src.shape[1:], dtype=src.dtype)
    return out.index_add_(0, seg, src)
def _pad(x, pw):
    flat = tuple(v for pair in reversed(pw) for v in pair)
    return torch.nn.functional.pad(x, flat)

kernel_name = 'standalone__sliding_block_cached__sampling'

def setup_inputs():

    _w = (lambda a: (lambda t: t.to(torch.bfloat16) if t.is_floating_point() else t)(torch.as_tensor(a)))
    B, Sq, D = 32, 1, 512
    Hq, Hkv, Sk, Dh = 32, 8, 2048, 128
    assert Hq % Hkv == 0, (Hq, Hkv)
    return {
        "x": _w((lambda *s: torch.randn(*s, dtype=torch.bfloat16) * 0.8)(B, Sq, D)),
        "k_cache": _w((lambda *s: torch.randn(*s, dtype=torch.bfloat16) * 0.8)(B, Hkv, Sk, Dh)),
        "v_cache": _w((lambda *s: torch.randn(*s, dtype=torch.bfloat16) * 0.05)(B, Hkv, Sk, Dh)),
        "wq": _w((lambda *s: torch.randn(*s, dtype=torch.bfloat16) * 0.8)(D, Hq * Dh) * (D ** -0.5)),
        "wo": _w((lambda *s: torch.randn(*s, dtype=torch.bfloat16) * 0.05)(Hq * Dh, D) * ((Hq * Dh) ** -0.5)),
    }

def reference(x, k_cache, v_cache, wq, wo):
    B, Sq, D = x.shape
    Hq, Dh = 32, 128
    Hkv, Sk = k_cache.shape[1], k_cache.shape[2]
    W = min(4096, max(256, Sk // 4))
    rep = Hq // Hkv
    q = (lambda x, *d: x.permute(*d))((x @ wq).reshape(B, Sq, Hq, Dh), 0, 2, 1, 3)
    k = (lambda x, n, axis: torch.repeat_interleave(x, n, dim=axis))(k_cache[:, :, Sk - W:, :], rep, axis=1)
    v = (lambda x, n, axis: torch.repeat_interleave(x, n, dim=axis))(v_cache[:, :, Sk - W:, :], rep, axis=1)
    scores = torch.einsum("bhqd,bhkd->bhqk", q, k) * (Dh ** -0.5)
    p = _softmax(scores, axis=-1)
    o = torch.einsum("bhqk,bhkd->bhqd", p, v)
    return (lambda x, *d: x.permute(*d))(o, 0, 2, 1, 3).reshape(B, Sq, Hq * Dh) @ wo
```

```python
import sys, math
KN = "standalone__sliding_block_cached__sampling"

HDR = """; Kernarg layout for this problem (64 bytes, ptrs only, base s[0:1]):
;   offset   0: d_in[0] x  shape=(32, 1, 512) dtype=bfloat16 strides=(1024, 1024, 2) contiguous=True
;   offset   8: d_in[1] k_cache  shape=(32, 8, 2048, 128) dtype=bfloat16 strides=(4194304, 524288, 256, 2) contiguous=True
;   offset  16: d_in[2] v_cache  shape=(32, 8, 2048, 128) dtype=bfloat16 strides=(4194304, 524288, 256, 2) contiguous=True
;   offset  24: d_in[3] wq  shape=(512, 4096) dtype=bfloat16 strides=(8192, 2) contiguous=True
;   offset  32: d_in[4] wo  shape=(4096, 512) dtype=bfloat16 strides=(1024, 2) contiguous=True
"""

class Cfg:
    stamps = False
    nk_thr = 2
    nv_thr_cnt = 6
    h_thr = 4
    ho_thr = 2
    spin_max = 0x40000

Q_WS = 0x0
O_WS = 0x40000
P_WS = 0x80000
WS_USED = 0x100000
STAMP_WS = 0x10000000
L_FLAG = 0
L_Q = 64
L_ML = 1280
L_PART = 2048
L_RED = 2048 + 16384
LDS_BYTES = L_RED + 8 * 2064 + 64
NST = 16

def gen(cfg):
    L = []
    e = L.append
    lab = [0]
    def stamp(i):
        if cfg.stamps:
            e(f"s_memrealtime s[{64+2*i}:{65+2*i}]")
    def srd(d, lo, size):
        e(f"s_mov_b32 s{d}, s{lo}"); e(f"s_mov_b32 s{d+1}, s{lo+1}")
        e(f"s_mov_b32 s{d+2}, {size:#x}"); e(f"s_mov_b32 s{d+3}, 0x20000")
    def write_stamps():
        if not cfg.stamps: return
        e("s_waitcnt lgkmcnt(0) vmcnt(0)")
        srd(56, 30, 0x20000000)
        e("s_mul_i32 s60, s2, 12"); e("s_add_u32 s60, s60, s3"); e(f"s_mul_i32 s60, s60, {NST*8}")
        e(f"s_add_u32 s60, s60, {STAMP_WS:#x}")
        e("s_mov_b64 exec, 1")
        e("v_mov_b32 v2, 0")
        for j in range(NST):
            e(f"v_mov_b32 v4, s{64+2*j}"); e(f"v_mov_b32 v5, s{65+2*j}")
            e(f"buffer_store_dwordx2 v[4:5], v2, s[56:59], s60 offen offset:{8*j}")
            e("s_waitcnt vmcnt(0)")

    if cfg.stamps:
        for j in range(NST):
            e(f"s_mov_b64 s[{64+2*j}:{65+2*j}], 0")
    stamp(0)
    e("s_cmp_ge_u32 s2, 256")
    e("s_cbranch_scc1 L_end")
    e("s_load_dwordx16 s[16:31], s[0:1], 0")
    e("v_lshrrev_b32 v1, 6, v0")
    e("v_and_b32 v0, 63, v0")
    e("v_mov_b32 v2, 0")
    e("v_readfirstlane_b32 s3, v1")
    e("v_mov_b32 v3, 0")
    e("v_mov_b32 v4, 0")
    e("v_mov_b32 v5, 0")
    e("ds_write_b128 v2, v[2:5]")
    e("s_and_b32 s4, s2, 7")
    e("s_lshr_b32 s5, s2, 3")
    e("s_mov_b32 s8, 0x05040100")
    e("s_mov_b32 s9, 0x07060302")
    e("s_waitcnt lgkmcnt(0)")
    e("s_barrier")
    e("s_cmp_lt_u32 s3, 4")
    e("s_cbranch_scc1 L_helper")

    KB, VB, QB, SB = 8, 72, 136, 152
    srd(32, 18, 0x8000000)
    srd(36, 20, 0x8000000)
    e("s_sub_u32 s6, s3, 4")
    e("s_lshl_b32 s10, s2, 19")
    e("s_lshl_b32 s11, s6, 14")
    e("s_add_u32 s10, s10, s11")
    e(f"s_add_u32 s10, s10, {1536*256}")
    e("s_lshl_b32 s11, s5, 12")
    e("s_xor_b32 s10, s10, s11")
    e("v_and_b32 v3, 3, v0")
    e("v_bfe_u32 v4, v0, 2, 2")
    e("v_lshl_add_u32 v3, v3, 2, v4")
    e("v_lshrrev_b32 v4, 4, v0")
    e("v_lshlrev_b32 v4, 4, v4")
    e("v_lshl_add_u32 v1, v3, 8, v4")
    e("v_lshlrev_b32 v2, 4, v0")
    n = 0
    for t in range(4):
        e(f"s_xor_b32 s11, s10, {t*4096}")
        for c in range(4):
            r = KB + 16*t + 4*c
            e(f"buffer_load_dwordx4 v[{r}:{r+3}], v1, s[32:35], s11 offen offset:{c*64} nt")
            n += 1
            if cfg.nk_thr is not None and n > cfg.nk_thr: e(f"s_waitcnt vmcnt({cfg.nk_thr})")
    stamp(1)
    for i in range(16):
        if i % 4 == 0: e(f"s_xor_b32 s11, s10, {(i//4)*4096}")
        r = VB + 4*i
        e(f"buffer_load_dwordx4 v[{r}:{r+3}], v2, s[36:39], s11 offen offset:{(i%4)*1024} nt")
        if cfg.nk_thr is not None and i < cfg.nv_thr_cnt: e(f"s_waitcnt vmcnt({cfg.nk_thr})")
    stamp(2)
    e("v_and_b32 v3, 3, v0")
    e("v_mul_u32_u24 v3, 272, v3")
    e("v_add_u32 v3, v3, v4")
    e("v_mov_b32 v5, 0")
    e(f"s_mov_b32 s12, {cfg.spin_max}")
    e("L_tq:")
    e(f"ds_read_b32 v6, v5 offset:{L_FLAG+8}")
    e("s_waitcnt lgkmcnt(0)")
    e("v_readfirstlane_b32 s11, v6")
    e("s_sub_u32 s12, s12, 1")
    e("s_cbranch_scc1 L_tq_done")
    e("s_cmp_eq_u32 s11, 1")
    e("s_cbranch_scc1 L_tq_done")
    e("s_sleep 2")
    e("s_branch L_tq")
    e("L_tq_done:")
    stamp(3)
    for c in range(4):
        e(f"ds_read_b128 v[{QB+4*c}:{QB+4*c+3}], v3 offset:{L_Q + c*64}")
    e("s_mov_b32 s14, 0x3e0293ee")
    e("s_waitcnt vmcnt(16)")
    for c in range(4):
        e(f"s_waitcnt lgkmcnt({3-c})")
        for t in range(4):
            a = KB + 16*t + 4*c
            src = "0" if c == 0 else f"v[{SB+4*t}:{SB+4*t+3}]"
            e(f"v_mfma_f32_16x16x32_bf16 v[{SB+4*t}:{SB+4*t+3}], v[{a}:{a+3}], v[{QB+4*c}:{QB+4*c+3}], {src}")
    e("s_mov_b32 s40, 0x000f000f"); e("s_mov_b32 s41, 0x000f000f")
    e("s_mov_b32 s42, 0x00f000f0"); e("s_mov_b32 s43, 0x00f000f0")
    e("s_mov_b32 s44, 0x0f000f00"); e("s_mov_b32 s45, 0x0f000f00")
    e("s_mov_b32 s46, 0xf000f000"); e("s_mov_b32 s47, 0xf000f000")
    S = lambda i: f"v{SB+i}"
    e(f"v_max3_f32 v5, {S(0)}, {S(1)}, {S(2)}")
    e(f"v_max3_f32 v6, {S(3)}, {S(4)}, {S(5)}")
    e(f"v_max3_f32 v5, v5, {S(6)}, {S(7)}")
    e(f"v_max3_f32 v6, v6, {S(8)}, {S(9)}")
    e(f"v_max3_f32 v5, v5, {S(10)}, {S(11)}")
    e(f"v_max3_f32 v6, v6, {S(12)}, {S(13)}")
    e(f"v_max3_f32 v5, v5, {S(14)}, {S(15)}")
    e("v_max_f32 v5, v5, v6")
    e("v_mov_b32 v6, v5")
    e("s_nop 1")
    e("v_permlane32_swap_b32 v5, v6")
    e("v_max_f32 v5, v5, v6")
    e("v_mov_b32 v6, v5")
    e("s_nop 1")
    e("v_permlane16_swap_b32 v5, v6")
    e("v_max_f32 v5, v5, v6")
    e("v_mul_f32 v6, s14, v5")
    for i in range(16):
        e(f"v_fma_f32 {S(i)}, {S(i)}, s14, -v6")
    for i in range(16):
        e(f"v_exp_f32 {S(i)}, {S(i)}")
    for u in range(2):
        for k in range(4):
            e(f"v_cvt_pk_bf16_f32 v{QB+4*u+k}, {S(8*u+2*k)}, {S(8*u+2*k+1)}")
    for i in range(8):
        e(f"v_add_f32 {S(i)}, {S(i)}, {S(i+8)}")
    for i in range(4):
        e(f"v_add_f32 {S(i)}, {S(i)}, {S(i+4)}")
    e(f"v_add_f32 {S(0)}, {S(0)}, {S(2)}")
    e(f"v_add_f32 {S(1)}, {S(1)}, {S(3)}")
    e(f"v_add_f32 v7, {S(0)}, {S(1)}")
    e("v_mov_b32 v5, v7")
    e("s_nop 1")
    e("v_permlane32_swap_b32 v7, v5")
    e("v_add_f32 v7, v7, v5")
    e("v_mov_b32 v5, v7")
    e("s_nop 1")
    e("v_permlane16_swap_b32 v7, v5")
    e("v_add_f32 v7, v7, v5")
    e("v_and_b32 v3, 3, v0")
    e("s_lshl_b32 s11, s6, 3")
    e("v_lshl_add_u32 v3, v3, 6, s11")
    e(f"ds_write_b64 v3, v[6:7] offset:{L_ML}")
    PM = KB
    for u in range(2):
        for q4 in range(4):
            for k in range(4):
                e(f"v_cndmask_b32 v{PM+16*u+4*q4+k}, 0, v{QB+4*u+k}, s[{40+2*q4}:{41+2*q4}]")
    stamp(4)
    ACC = SB
    for u in range(2):
        TB = KB + 32 if u == 0 else VB
        for ip in range(4):
            rem = 16 - (8*u + 2*ip + 2)
            e(f"s_waitcnt vmcnt({rem})")
            r0 = VB + 32*u + 8*ip; r1 = r0 + 4
            for w in range(4):
                e(f"v_perm_b32 v{TB+4*(2*w)+ip}, v{r1+w}, v{r0+w}, s8")
                e(f"v_perm_b32 v{TB+4*(2*w+1)+ip}, v{r1+w}, v{r0+w}, s9")
        e("s_nop 0")
        for j in (0, 4, 1, 5, 2, 6, 3, 7):
            a = ACC + 4*(j >> 2)
            src = "0" if (u == 0 and (j & 3) == 0) else f"v[{a}:{a+3}]"
            b = PM + 16*u + 4*(j & 3)
            e(f"v_mfma_f32_16x16x32_bf16 v[{a}:{a+3}], v[{TB+4*j}:{TB+4*j+3}], v[{b}:{b+3}], {src}")
    e("s_lshl_b32 s11, s6, 11")
    e("v_lshl_add_u32 v3, v0, 4, s11")
    e("s_nop 6")
    e(f"ds_write_b128 v3, v[{ACC}:{ACC+3}] offset:{L_PART}")
    e(f"ds_write_b128 v3, v[{ACC+4}:{ACC+7}] offset:{L_PART+1024}")
    e("s_waitcnt lgkmcnt(0)")
    stamp(5)
    e("s_barrier")
    write_stamps()
    e("s_endpgm")

    e("L_helper:")
    e("s_setprio 3")
    WB, WT, XB = 8, 72, 136
    srd(32, 16, 0x8000)
    srd(36, 22, 0x400000)
    srd(40, 24, 0x400000)
    srd(44, 30, WS_USED)
    srd(48, 28, 256)
    srd(52, 26, 0x8000)
    e("s_lshr_b32 s6, s5, 3")
    e("s_and_b32 s7, s5, 7")
    e("v_lshrrev_b32 v1, 4, v0")
    e("v_bfe_u32 v2, v0, 3, 1")
    e("v_and_b32 v3, 7, v0")
    e("v_lshl_add_u32 v4, v2, 2, v1")
    e("v_lshlrev_b32 v5, 4, v4")
    e("v_lshl_add_u32 v5, v3, 10, v5")
    e("v_lshlrev_b32 v6, 16, v4")
    e("v_lshl_add_u32 v6, v3, 4, v6")
    e("s_lshl_b32 s10, s6, 13")
    e("s_lshl_b32 s11, s3, 8")
    e("s_add_u32 s10, s10, s11")
    e(f"buffer_load_dwordx4 v[{XB}:{XB+3}], v5, s[32:35], s10 offen")
    e(f"buffer_load_dwordx4 v[{XB+4}:{XB+7}], v5, s[32:35], s10 offen offset:128")
    e("s_lshl_b32 s12, s3, 20")
    e("s_lshl_b32 s11, s4, 10")
    e("s_add_u32 s12, s12, s11")
    e("s_lshl_b32 s11, s7, 7")
    e("s_add_u32 s12, s12, s11")
    n = 2
    for grp in range(2):
        for i in range(8):
            r = WB + 32*grp + 4*i
            e(f"s_add_u32 s11, s12, {(grp*64+i)*8192}")
            e(f"buffer_load_dwordx4 v[{r}:{r+3}], v6, s[36:39], s11 offen nt")
            n += 1
            if cfg.h_thr is not None and n > cfg.h_thr: e(f"s_waitcnt vmcnt({cfg.h_thr})")
    e("v_mov_b32 v144, -1"); e("v_mov_b32 v145, -1")
    e("s_lshl_b32 s13, s4, 5"); e("s_add_u32 s13, s13, s5"); e("s_lshl_b32 s13, s13, 10")
    e("s_lshl_b32 s11, s3, 8"); e("s_add_u32 s13, s13, s11"); e(f"s_add_u32 s13, s13, {O_WS}")
    e("v_lshlrev_b32 v146, 2, v0")
    e("buffer_store_dword v144, v146, s[44:47], s13 offen sc1")
    e("s_lshl_b32 s14, s5, 14"); e("s_lshl_b32 s11, s4, 8"); e("s_add_u32 s14, s14, s11")
    e("s_lshl_b32 s11, s3, 12"); e("s_add_u32 s14, s14, s11"); e(f"s_add_u32 s14, s14, {P_WS}")
    e("v_lshrrev_b32 v147, 5, v0"); e("v_and_b32 v148, 31, v0")
    e("v_lshlrev_b32 v147, 11, v147"); e("v_lshl_add_u32 v147, v148, 3, v147")
    e("buffer_store_dwordx2 v[144:145], v147, s[44:47], s14 offen sc1")
    e("v_mul_u32_u24 v149, 2064, v3")
    e("v_lshl_add_u32 v149, v1, 7, v149")
    e("s_lshl_b32 s11, s3, 9")
    e("v_add_u32 v149, s11, v149")
    e("v_lshrrev_b32 v150, 5, v0")
    e("s_lshl_b32 s11, s3, 1")
    e("v_add_u32 v150, s11, v150")
    e("v_mul_u32_u24 v150, 2064, v150")
    e("v_bfe_u32 v151, v0, 4, 1")
    e("v_lshl_add_u32 v150, v151, 7, v150")
    e("v_and_b32 v151, 3, v0")
    e("v_lshl_add_u32 v150, v151, 5, v150")
    e("v_bfe_u32 v151, v0, 2, 2")
    e("v_lshl_add_u32 v150, v151, 2, v150")
    e(f"v_add_u32 v150, {L_RED}, v150")
    e("v_add_u32 v151, 16, v150")

    def transpose(nafter):
        for grp in range(2):
            for ip in range(4):
                rem = 16 - (8*grp + 2*ip + 2) + nafter
                e(f"s_waitcnt vmcnt({rem})")
                r0 = WB + 32*grp + 8*ip; r1 = r0 + 4
                for w in range(4):
                    e(f"v_perm_b32 v{WT+32*grp+4*(2*w)+ip}, v{r1+w}, v{r0+w}, s8")
                    e(f"v_perm_b32 v{WT+32*grp+4*(2*w+1)+ip}, v{r1+w}, v{r0+w}, s9")
    def proj_mfma():
        for grp in range(2):
            for j in range(8):
                a = WB + 4*j
                src = "0" if grp == 0 else f"v[{a}:{a+3}]"
                t = WT + 32*grp + 4*j
                e(f"v_mfma_f32_16x16x32_bf16 v[{a}:{a+3}], v[{t}:{t+3}], v[{XB+4*grp}:{XB+4*grp+3}], {src}")
        e("s_mov_b32 exec_lo, 0x00ff00ff")
        e("s_mov_b32 exec_hi, 0xff00ff00")
        for j in range(8):
            a = WB + 4*j
            e(f"ds_write_b128 v149, v[{a}:{a+3}] offset:{L_RED + 16*j}")
        e("s_mov_b64 exec, -1")
    def reduce():
        for p in range(4):
            e(f"ds_read2st64_b32 v[{40+2*p}:{41+2*p}], v150 offset0:{2*p} offset1:{2*p+1}")
            e(f"ds_read2st64_b32 v[{48+2*p}:{49+2*p}], v151 offset0:{2*p} offset1:{2*p+1}")
        e("s_waitcnt lgkmcnt(4)")
        e("v_pk_add_f32 v[40:41], v[40:41], v[42:43]")
        e("v_pk_add_f32 v[48:49], v[48:49], v[50:51]")
        e("s_waitcnt lgkmcnt(0)")
        e("v_pk_add_f32 v[44:45], v[44:45], v[46:47]")
        e("v_pk_add_f32 v[52:53], v[52:53], v[54:55]")
        e("v_pk_add_f32 v[40:41], v[40:41], v[44:45]")
        e("v_pk_add_f32 v[48:49], v[48:49], v[52:53]")
        e("v_add_f32 v40, v40, v41")
        e("v_add_f32 v41, v48, v49")

    transpose(2)
    stamp(1)
    e("s_nop 0")
    proj_mfma()
    e("v_mov_b32 v152, 0"); e("v_mov_b32 v153, 1")
    e("s_waitcnt lgkmcnt(0)")
    e("s_mov_b64 exec, 1")
    e(f"ds_add_u32 v152, v153 offset:{L_FLAG}")
    e("s_mov_b64 exec, -1")
    e(f"s_mov_b32 s15, {cfg.spin_max}")
    e("L_hs1:")
    e(f"ds_read_b32 v154, v152 offset:{L_FLAG}")
    e("s_waitcnt lgkmcnt(0)")
    e("v_readfirstlane_b32 s11, v154")
    e("s_sub_u32 s15, s15, 1")
    e("s_cbranch_scc1 L_hs1_done")
    e("s_cmp_lt_u32 s11, 4")
    e("s_cbranch_scc1 L_hs1")
    e("L_hs1_done:")
    reduce()
    e("v_cvt_pk_bf16_f32 v40, v40, v41")
    e("s_lshl_b32 s11, s6, 3"); e("s_lshl_b32 s12, s3, 1"); e("s_add_u32 s11, s11, s12")
    e("s_lshl_b32 s11, s11, 3"); e("s_add_u32 s11, s11, s4"); e("s_lshl_b32 s11, s11, 10")
    e("s_lshl_b32 s12, s7, 7"); e("s_add_u32 s11, s11, s12")
    e("v_lshrrev_b32 v42, 5, v0"); e("v_lshlrev_b32 v42, 13, v42"); e("v_lshl_add_u32 v42, v148, 2, v42")
    e("buffer_store_dword v40, v42, s[44:47], s11 offen sc1")
    stamp(2)
    e("s_waitcnt vmcnt(0)")
    e("s_mov_b64 exec, 1")
    e(f"ds_add_rtn_u32 v154, v152, v153 offset:{L_FLAG+4}")
    e("s_mov_b64 exec, -1")
    e("s_waitcnt lgkmcnt(0)")
    e("v_readfirstlane_b32 s11, v154")
    e("s_cmp_lg_u32 s11, 3")
    e("s_cbranch_scc1 L_nosig")
    e("s_and_b32 s11, s2, 63"); e("s_lshl_b32 s11, s11, 2")
    e("s_mov_b32 s61, 1")
    e("s_atomic_add s61, s[28:29], s11 glc")
    e("L_nosig:")
    stamp(3)
    e("s_cmp_lg_u32 s3, 0")
    e("s_cbranch_scc1 L_wo")
    e(f"s_mov_b32 s15, {cfg.spin_max}")
    e("L_hp:")
    e("buffer_load_dword v154, v146, s[48:51], 0 offen sc1")
    e("s_waitcnt vmcnt(0)")
    e("v_cmp_ne_u32 vcc, 4, v154")
    e("s_sub_u32 s15, s15, 1")
    e("s_cbranch_scc1 L_hp_done")
    e("s_cbranch_vccnz L_hp")
    e("L_hp_done:")
    stamp(4)
    e("s_lshl_b32 s11, s2, 10")
    e("v_lshlrev_b32 v42, 4, v0")
    e("buffer_load_dwordx4 v[44:47], v42, s[44:47], s11 offen sc1")
    e("v_lshl_add_u32 v42, v1, 4, v42")
    e("s_waitcnt vmcnt(0)")
    e(f"ds_write_b128 v42, v[44:47] offset:{L_Q}")
    e("s_waitcnt lgkmcnt(0)")
    e(f"ds_write_b32 v152, v153 offset:{L_FLAG+8}")
    stamp(5)
    e("L_wo:")
    e("v_and_b32 v6, 1, v1"); e("v_lshlrev_b32 v6, 8, v6")
    e("v_lshl_add_u32 v6, v2, 1, v6")
    e("v_lshrrev_b32 v7, 1, v1")
    e("v_add_u32 v6, v6, v7")
    e("v_lshlrev_b32 v6, 10, v6")
    e("v_lshl_add_u32 v6, v3, 4, v6")
    e("s_and_b32 s12, s3, 1"); e("s_lshl_b32 s12, s12, 16")
    e("s_lshr_b32 s11, s3, 1"); e("s_lshl_b32 s11, s11, 12"); e("s_add_u32 s12, s12, s11")
    e("s_lshl_b32 s11, s4, 19"); e("s_add_u32 s12, s12, s11")
    e("s_lshl_b32 s11, s7, 7"); e("s_add_u32 s12, s12, s11")
    n = 0
    for grp in range(2):
        for i in range(8):
            r = WB + 32*grp + 4*i
            rows = (i >> 2)*128 + grp*32 + (i & 3)*8
            e(f"s_add_u32 s11, s12, {rows*1024}")
            e(f"buffer_load_dwordx4 v[{r}:{r+3}], v6, s[40:43], s11 offen nt")
            n += 1
            if cfg.ho_thr is not None and n > cfg.ho_thr: e(f"s_waitcnt vmcnt({cfg.ho_thr})")
    transpose(0)
    e("s_lshl_b32 s11, s3, 9")
    e("v_lshl_add_u32 v6, v0, 3, s11")
    e("v_bfe_u32 v7, v0, 1, 2")
    e("v_lshlrev_b32 v7, 6, v7")
    e("s_lshl_b32 s11, s4, 15"); e("s_add_u32 s10, s10, s11"); e(f"s_add_u32 s10, s10, {O_WS}")
    e("s_waitcnt lgkmcnt(0)")
    stamp(6)
    e("s_barrier")
    stamp(7)
    for k in range(4):
        e(f"ds_read_b128 v[{8+4*k}:{11+4*k}], v7 offset:{L_ML+16*k}")
    for w in range(8):
        e(f"ds_read_b64 v[{24+2*w}:{25+2*w}], v6 offset:{L_PART+2048*w}")
    e("s_waitcnt lgkmcnt(8)")
    e("v_max3_f32 v40, v8, v10, v12")
    e("v_max3_f32 v41, v14, v16, v18")
    e("v_max3_f32 v40, v40, v20, v22")
    e("v_max_f32 v40, v40, v41")
    for w in range(8):
        e(f"v_sub_f32 v{8+2*w}, v{8+2*w}, v40")
    for w in range(8):
        e(f"v_exp_f32 v{8+2*w}, v{8+2*w}")
    e("v_mul_f32 v41, v8, v9")
    e("v_mul_f32 v42, v10, v11")
    for w in range(2, 8):
        e(f"v_fmac_f32 v{41+(w&1)}, v{8+2*w}, v{9+2*w}")
    e("v_add_f32 v41, v41, v42")
    e("v_rcp_f32 v41, v41")
    e("s_waitcnt lgkmcnt(0)")
    e("v_mul_f32 v44, v24, v8"); e("v_mul_f32 v45, v25, v8")
    e("v_mul_f32 v46, v26, v10"); e("v_mul_f32 v47, v27, v10")
    for w in range(2, 8):
        d = 44 + 2*(w & 1)
        e(f"v_fmac_f32 v{d}, v{24+2*w}, v{8+2*w}"); e(f"v_fmac_f32 v{d+1}, v{25+2*w}, v{8+2*w}")
    e("v_add_f32 v44, v44, v46"); e("v_add_f32 v45, v45, v47")
    e("v_mul_f32 v44, v44, v41"); e("v_mul_f32 v45, v45, v41")
    e("v_cvt_pk_bf16_f32 v44, v44, v45")
    e("v_min_u32 v44, -2, v44")
    e("buffer_store_dword v44, v146, s[44:47], s13 offen sc1")
    stamp(8)
    e(f"s_mov_b32 s15, {cfg.spin_max}")
    e("L_op:")
    e(f"buffer_load_dwordx4 v[{XB}:{XB+3}], v5, s[44:47], s10 offen sc1")
    e(f"buffer_load_dwordx4 v[{XB+4}:{XB+7}], v5, s[44:47], s10 offen offset:128 sc1")
    e("s_waitcnt vmcnt(0)")
    e(f"v_max3_u32 v40, v{XB}, v{XB+1}, v{XB+2}")
    e(f"v_max3_u32 v41, v{XB+3}, v{XB+4}, v{XB+5}")
    e(f"v_max3_u32 v40, v40, v{XB+6}, v{XB+7}")
    e("v_max_u32 v40, v40, v41")
    e("v_cmp_eq_u32 vcc, -1, v40")
    e("s_sub_u32 s15, s15, 1")
    e("s_cbranch_scc1 L_op_done")
    e("s_cbranch_vccnz L_op")
    e("L_op_done:")
    stamp(9)
    proj_mfma()
    e("s_waitcnt lgkmcnt(0)")
    e("s_barrier")
    reduce()
    e("v_min_u32 v40, -2, v40"); e("v_min_u32 v41, -2, v41")
    e("buffer_store_dwordx2 v[40:41], v147, s[44:47], s14 offen sc1")
    stamp(10)
    e("s_cmp_lg_u32 s3, 0")
    e("s_cbranch_scc1 L_hend")
    e("s_lshl_b32 s11, s5, 3"); e("s_add_u32 s11, s11, s4"); e("s_lshl_b32 s11, s11, 11"); e(f"s_add_u32 s11, s11, {P_WS}")
    e("v_lshlrev_b32 v42, 4, v0")
    e("s_lshl_b32 s12, s6, 3"); e("s_add_u32 s12, s12, s4"); e("s_lshl_b32 s12, s12, 10")
    e("s_lshl_b32 s13, s7, 7"); e("s_add_u32 s12, s12, s13")
    e("v_lshlrev_b32 v43, 3, v0")
    e(f"s_mov_b32 s15, {cfg.spin_max}")
    e("L_fp:")
    e("buffer_load_dwordx4 v[8:11], v42, s[44:47], s11 offen sc1")
    e("buffer_load_dwordx4 v[12:15], v42, s[44:47], s11 offen offset:1024 sc1")
    e("s_waitcnt vmcnt(0)")
    e("v_max3_u32 v40, v8, v9, v10")
    e("v_max3_u32 v41, v11, v12, v13")
    e("v_max3_u32 v40, v40, v14, v15")
    e("v_max_u32 v40, v40, v41")
    e("v_cmp_eq_u32 vcc, -1, v40")
    e("s_sub_u32 s15, s15, 1")
    e("s_cbranch_scc1 L_fp_done")
    e("s_cbranch_vccnz L_fp")
    e("L_fp_done:")
    stamp(11)
    e("v_pk_add_f32 v[8:9], v[8:9], v[12:13]")
    e("v_pk_add_f32 v[10:11], v[10:11], v[14:15]")
    e("s_nop 1")
    e("v_permlane32_swap_b32 v8, v10")
    e("v_permlane32_swap_b32 v9, v11")
    e("v_add_f32 v8, v8, v10")
    e("v_add_f32 v9, v9, v11")
    e("v_mov_b32 v10, v8"); e("v_mov_b32 v11, v9")
    e("s_nop 1")
    e("v_permlane16_swap_b32 v8, v10")
    e("v_permlane16_swap_b32 v9, v11")
    e("v_add_f32 v8, v8, v10")
    e("v_add_f32 v9, v9, v11")
    e("v_cvt_pk_bf16_f32 v8, v8, v9")
    e("v_and_b32 v43, 15, v0"); e("v_lshlrev_b32 v43, 3, v43")
    e("v_lshrrev_b32 v44, 5, v0"); e("v_lshl_add_u32 v43, v44, 2, v43")
    e("s_mov_b32 exec_lo, 0x0000ffff"); e("s_mov_b32 exec_hi, 0x0000ffff")
    e("buffer_store_dword v8, v43, s[52:55], s12 offen")
    if cfg.stamps:
        e("s_waitcnt vmcnt(0)")
    stamp(12)
    e("L_hend:")
    write_stamps()
    e("L_end:")
    e("s_endpgm")

    body = "\n".join(x if x.endswith(":") else "    " + x for x in L)
    return (HDR + f"; @launch grid=(256,1,1) block=(768,1,1) lds={LDS_BYTES}\n"
        + f""".amdgcn_target "amdgcn-amd-amdhsa--gfx950"
.text
.globl {KN}_kernel
.p2align 8
.type {KN}_kernel,@function
{KN}_kernel:
""" + body + f"""
.section .rodata,"a"
.p2align 6
.amdhsa_kernel {KN}_kernel
  .amdhsa_next_free_vgpr 168
  .amdhsa_next_free_sgpr 102
  .amdhsa_accum_offset 168
  .amdhsa_group_segment_fixed_size 0
  .amdhsa_kernarg_size 64
  .amdhsa_user_sgpr_count 2
  .amdhsa_user_sgpr_kernarg_segment_ptr 1
  .amdhsa_system_sgpr_workgroup_id_x 1
.end_amdhsa_kernel
""")

if __name__ == "__main__":
    cfg = Cfg()
    out = sys.argv[1]
    for kv in sys.argv[2:]:
        k, v = kv.split("=")
        setattr(cfg, k, None if v == "None" else (v == "True" if v in ("True", "False") else int(v, 0)))
    open(out, "w").write(gen(cfg))
```

```python
import re, sys
TRANS = ("v_exp_f32","v_log_f32","v_rcp_f32","v_rsq_f32","v_sqrt_f32","v_sin_f32","v_cos_f32")
def regs(tok, kind):
    tok = tok.strip().lstrip("-")
    m = re.fullmatch(r"abs\((.*)\)", tok)
    if m: tok = m.group(1)
    m = re.fullmatch(kind + r"(\d+)", tok)
    if m: return {int(m.group(1))}
    m = re.fullmatch(kind + r"\[(\d+):(\d+)\]", tok)
    if m: return set(range(int(m.group(1)), int(m.group(2)) + 1))
    if kind == "s" and tok == "vcc": return {106, 107}
    return set()
class I: pass
def parse(line):
    line = line.split(";")[0].strip()
    if not line or line.endswith(":") or line.startswith("."): return None
    parts = line.split(None, 1)
    op = parts[0]; rest = parts[1] if len(parts) > 1 else ""
    ops = [x.strip() for x in rest.split(",")]
    last = ops[-1].split() if ops else []
    mods = " ".join(last[1:]) if last else ""
    if ops and last: ops[-1] = last[0]
    i = I(); i.op = op; i.text = line; i.mods = mods
    i.vw = set(); i.vr = set(); i.sw = set(); i.sr = set(); i.A = i.B = i.C = set()
    i.states = 1
    i.mfma = op.startswith("v_mfma"); i.valu = op.startswith("v_") and not i.mfma
    i.dpp = op.endswith("_dpp"); i.perml = op.startswith("v_permlane"); i.trans = op in TRANS
    i.vmem = op.startswith(("buffer_", "global_")); i.ds = op.startswith("ds_")
    i.dppr = set()
    if op == "s_nop": i.states = int(ops[0], 0) + 1
    if i.mfma:
        i.vw = regs(ops[0], "v"); i.A = regs(ops[1], "v"); i.B = regs(ops[2], "v"); i.C = regs(ops[3], "v")
        i.vr = i.A | i.B | i.C
    elif i.valu:
        if op.startswith("v_cmp") or op.startswith("v_readfirstlane") or op.startswith("v_readlane"):
            i.sw = regs(ops[0], "s")
            for o in ops[1:]: i.vr |= regs(o, "v"); i.sr |= regs(o, "s")
        else:
            i.vw = regs(ops[0], "v")
            for o in ops[1:]: i.vr |= regs(o, "v"); i.sr |= regs(o, "s")
            if op.startswith(("v_fmac", "v_pk_fmac")): i.vr |= i.vw
            if i.perml: i.vw |= regs(ops[1], "v"); i.vr |= i.vw
            if i.dpp:
                i.dppr = set(i.vr)
                if "bank_mask:0xf" not in mods or "row_mask:0xf" not in mods: i.dppr |= i.vw; i.vr |= i.vw
    elif i.vmem:
        st = "store" in op or "atomic" in op
        if " lds" in " " + mods:
            for o in ops: i.vr |= regs(o, "v"); i.sr |= regs(o, "s")
        elif st:
            for o in ops: i.vr |= regs(o, "v"); i.sr |= regs(o, "s")
            i.sdata = regs(ops[0], "v") if op.startswith("buffer") else regs(ops[1], "v")
        else:
            i.vw = regs(ops[0], "v")
            for o in ops[1:]: i.vr |= regs(o, "v"); i.sr |= regs(o, "s")
    elif i.ds:
        if "read" in op or "rtn" in op:
            i.vw = regs(ops[0], "v")
            for o in ops[1:]: i.vr |= regs(o, "v")
        else:
            for o in ops: i.vr |= regs(o, "v")
    return i
def check(text):
    ins = [x for x in (parse(l) for l in text.splitlines()) if x]
    bad = 0
    for n, c in enumerate(ins):
        dist = 0
        for k in range(n - 1, max(-1, n - 24), -1):
            p = ins[k]
            if p.op in ("s_endpgm", "s_branch"): break
            need = 0; why = ""
            def req(x, w):
                nonlocal need, why
                if x > need: need, why = x, w
            if p.valu:
                if c.dpp and p.vw & c.dppr: req(2, "valu->dpp")
                if c.perml and p.vw & c.vr: req(2, "valu->permlane")
                if c.mfma and p.vw & c.vr: req(2, "valu->mfma")
                if c.op.startswith(("v_readfirstlane", "v_readlane")) and p.vw & c.vr: req(1, "valu->readlane")
                if p.trans and c.valu and not c.trans and p.vw & c.vr: req(1, "trans->valu")
                if c.valu and p.sw & c.sr: req(2, "valu sgpr->valu")
                if c.vmem and p.sw & c.sr: req(5, "valu sgpr->vmem")
            if p.mfma:
                if (c.valu and p.vw & (c.vr | c.vw)) or ((c.vmem or c.ds) and p.vw & (c.vr | c.vw)): req(8, "mfma->valu/mem")
                if c.mfma and p.vw & (c.A | c.B): req(8, "mfma->mfma AB")
                if c.mfma and p.vw & c.C and p.vw != c.C: req(6, "mfma->mfma C partial")
                if c.valu and p.C & c.vw: req(3, "mfma C WAR")
            if p.vmem and ("x4" in p.op or "x3" in p.op) and "store" in p.op:
                if c.valu and p.sdata & c.vw: req(2, "store data WAR")
                if (c.vmem or c.ds) and p.sdata & c.vw: req(1, "store data WAR")
            if dist < need:
                print(f"HAZARD {why}: need {need} have {dist}\n    {p.text}\n    {c.text}")
                bad += 1
            dist += p.states
    return bad
if __name__ == "__main__":
    for f in sys.argv[1:]:
        b = check(open(f).read())
        print(f, "hazards:", b)
```

```python
import sys, math
KN = "standalone__sliding_block_cached__sampling"

HDR = """; Kernarg layout for this problem (64 bytes, ptrs only, base s[0:1]):
;   offset   0: d_in[0] x  shape=(32, 1, 512) dtype=bfloat16 strides=(1024, 1024, 2) contiguous=True
;   offset   8: d_in[1] k_cache  shape=(32, 8, 2048, 128) dtype=bfloat16 strides=(4194304, 524288, 256, 2) contiguous=True
;   offset  16: d_in[2] v_cache  shape=(32, 8, 2048, 128) dtype=bfloat16 strides=(4194304, 524288, 256, 2) contiguous=True
;   offset  24: d_in[3] wq  shape=(512, 4096) dtype=bfloat16 strides=(8192, 2) contiguous=True
;   offset  32: d_in[4] wo  shape=(4096, 512) dtype=bfloat16 strides=(1024, 2) contiguous=True
;   offset  56: d_ws      536870912 bytes workspace
"""

class Cfg:
    stamps = False
    nk_thr = 2
    nv_thr = 2
    nv_pre = 8
    nv_extra = 3
    h_thr = 5
    ho_thr = 3
    qpoll_at = 8
    spin_max = 0x40000
    hprio = 3
    xnt = ""
    alt = False
    boost = 0

WS_USED = 0x200000
STAMP_WS = 0x10000000
L_FLAG = 0
L_ML = 256
L_Q = 512
L_PART = 1536
L_RED = L_PART + 16384
LDS_BYTES = L_RED + 16 * 1280
S_Q, S_O, S_P = 0, 2048, 4096
NST = 16

def gen(cfg):
    L = []
    e = L.append
    def stamp(i):
        if cfg.stamps:
            e(f"s_memrealtime s[{64+2*i}:{65+2*i}]")
    def srd_c(d, size):
        e(f"s_mov_b32 s{d+2}, {size:#x}"); e(f"s_mov_b32 s{d+3}, 0x20000")
    def srd_p(d, lo):
        e(f"s_mov_b64 s[{d}:{d+1}], s[{lo}:{lo+1}]")
    def write_stamps():
        if not cfg.stamps: return
        e("s_waitcnt lgkmcnt(0) vmcnt(0)")
        srd_p(56, 30); srd_c(56, 0x20000000)
        e("s_mul_i32 s60, s2, 12"); e("s_add_u32 s60, s60, s3"); e(f"s_mul_i32 s60, s60, {NST*8}")
        e(f"s_add_u32 s60, s60, {STAMP_WS:#x}")
        e("s_mov_b64 exec, 1")
        e("v_mov_b32 v2, 0")
        for j in range(NST):
            e(f"v_mov_b32 v4, s{64+2*j}"); e(f"v_mov_b32 v5, s{65+2*j}")
            e(f"buffer_store_dwordx2 v[4:5], v2, s[56:59], s60 offen offset:{8*j}")
            e("s_waitcnt vmcnt(0)")
    def dpp(op, d, s0, s1, ctl, bank=0xf):
        if s1 is None: e(f"{op}_dpp v{d}, v{s0} {ctl} row_mask:0xf bank_mask:{bank:#x}")
        else: e(f"{op}_dpp v{d}, v{s0}, v{s1} {ctl} row_mask:0xf bank_mask:{bank:#x}")

    KB, VB, QB, DT, RB, CB, ACC = 8, 72, 136, 140, 144, 148, 152
    stamp(0)
    e("s_load_dwordx16 s[16:31], s[0:1], 0")
    e("v_lshrrev_b32 v1, 6, v0")
    e("s_cmp_ge_u32 s2, 256")
    e("s_cbranch_scc1 L_end")
    e("v_readfirstlane_b32 s3, v1")
    e("v_and_b32 v0, 63, v0")
    e("s_and_b32 s4, s2, 7")
    e("s_lshr_b32 s5, s2, 3")
    e("s_lshl_b32 s62, s2, 13")
    srd_c(44, WS_USED)
    e("s_cmp_ge_u32 s3, 4")
    e("s_cbranch_scc1 L_attn")

    WQ, WO, TQ, TO, XB = 8, 40, 72, 104, 136
    if cfg.hprio: e(f"s_setprio {cfg.hprio}")
    e("s_lshr_b32 s6, s5, 3")
    e("s_and_b32 s7, s5, 7")
    e("s_and_b32 s59, s6, 1")
    e("s_lshr_b32 s58, s6, 1")
    e("v_lshrrev_b32 v1, 4, v0")
    e("v_and_b32 v3, 15, v0")
    e("v_lshlrev_b32 v7, 4, v1")
    e("v_lshl_add_u32 v5, v3, 10, v7")
    e("v_lshlrev_b32 v6, 16, v1")
    e("v_lshl_add_u32 v6, v3, 3, v6")
    e("v_and_b32 v4, 1, v1"); e("v_lshlrev_b32 v4, 8, v4")
    e("v_lshrrev_b32 v2, 1, v1"); e("v_add_u32 v4, v4, v2")
    e("v_lshlrev_b32 v4, 10, v4"); e("v_lshl_add_u32 v4, v3, 3, v4")
    e("s_lshl_b32 s63, s58, 14"); e("s_lshl_b32 s11, s59, 9"); e("s_add_u32 s63, s63, s11")
    e("s_lshl_b32 s10, s3, 7"); e("s_add_u32 s63, s63, s10"); e("s_add_u32 s10, s10, s11")
    e("s_lshl_b32 s12, s10, 12")
    e("s_lshl_b32 s11, s4, 10"); e("s_add_u32 s12, s12, s11")
    e("s_lshl_b32 s14, s7, 7"); e("s_add_u32 s12, s12, s14")
    e("s_lshl_b32 s13, s4, 19"); e("s_add_u32 s13, s13, s14")
    e("s_lshl_b32 s11, s3, 15"); e("s_add_u32 s13, s13, s11")
    e("s_lshl_b32 s11, s59, 12"); e("s_add_u32 s13, s13, s11")
    srd_c(32, 0x8000); srd_c(36, 0x400000); srd_c(40, 0x400000); srd_c(48, 256)
    for r in range(144, 148): e(f"v_mov_b32 v{r}, -1")
    e("v_lshlrev_b32 v155, 4, v0")
    e("v_and_b32 v156, 31, v0"); e("v_lshlrev_b32 v156, 3, v156")
    e("s_and_b32 s15, s2, 31"); e("s_lshl_b32 s15, s15, 3")
    e("s_mov_b32 s61, 1")
    e(f"s_add_u32 s60, s62, {S_P}")
    e("s_barrier")
    e("s_cmp_lg_u32 s3, 0")
    e("s_waitcnt lgkmcnt(0)")
    srd_p(36, 22); srd_p(44, 30); srd_p(32, 16); srd_p(40, 24); srd_p(48, 28)
    e("s_cbranch_scc1 L_noclear")
    for k in range(3):
        e(f"buffer_store_dwordx4 v[144:147], v155, s[44:47], s62 offen offset:{1024*k} sc1")
    for k in range(4):
        e(f"buffer_store_dwordx4 v[144:147], v155, s[44:47], s60 offen offset:{1024*k} sc1")
    e("L_noclear:")
    seq = [("x", 0, 0), ("x", 1, 0)] + [("wq", r, i) for r in range(2) for i in range(8)] + [("chk", 0, 0)]
    pos = {}
    for n, (k, r, i) in enumerate(seq):
        pos[(k, r, i)] = n
        if k == "wq":
            d = WQ + 16*r + 2*i
            if r or i: e(f"s_add_u32 s11, s12, {(r*32+i)*8192}")
            e(f"buffer_load_dwordx2 v[{d}:{d+1}], v6, s[36:39], {'s11' if (r or i) else 's12'} offen nt")
        elif k == "wo":
            d = WO + 16*r + 2*i
            rows = (i >> 2)*128 + (i & 3)*8
            e(f"s_add_u32 s11, s13, {rows*1024}")
            e(f"buffer_load_dwordx2 v[{d}:{d+1}], v4, s[40:43], s11 offen offset:{r*2048} nt")
        elif k == "x":
            e(f"buffer_load_dwordx4 v[{XB+4*r}:{XB+4*r+3}], v5, s[32:35], s63 offen offset:{64*r} {cfg.xnt}")
        else:
            e("buffer_load_dword v154, v156, s[48:51], 0 offen sc1")
        if n >= cfg.h_thr and n < len(seq) - 1: e(f"s_waitcnt vmcnt({cfg.h_thr})")
        if n == cfg.h_thr:
            e("s_cmp_lg_u32 s3, 0")
            e("s_cbranch_scc1 L_noarr")
            e("s_atomic_add s61, s[28:29], s15 glc")
            e("L_noarr:")
    NSEQ = len(seq)
    e("s_branch L_helper2")

    e("L_attn:")
    e("s_sub_u32 s6, s3, 4")
    e("s_lshl_b32 s10, s2, 19")
    e("s_lshl_b32 s11, s6, 14")
    e("s_add_u32 s10, s10, s11")
    e(f"s_add_u32 s10, s10, {1536*256}")
    e("s_lshl_b32 s11, s5, 12")
    e("s_xor_b32 s10, s10, s11")
    e("v_and_b32 v3, 3, v0")
    e("v_bfe_u32 v4, v0, 2, 2")
    e("v_lshrrev_b32 v5, 4, v0")
    e("v_lshlrev_b32 v5, 6, v5")
    e("v_lshl_add_u32 v1, v4, 8, v5")
    e("v_lshl_add_u32 v1, v3, 4, v1")
    e("v_lshlrev_b32 v2, 4, v0")
    srd_c(32, 0x8000000); srd_c(36, 0x8000000)
    tcount = [0]
    def thr(n):
        if cfg.boost:
            tcount[0] += 1
            e(f"s_waitcnt vmcnt({n + cfg.boost})")
            e(f"s_cbranch_vccnz L_thr{tcount[0]}")
            e(f"s_waitcnt vmcnt({n})")
            e(f"L_thr{tcount[0]}:")
        else:
            e(f"s_waitcnt vmcnt({n})")
    if cfg.boost:
        e("s_and_b32 s11, s5, 7")
        e("s_cmp_eq_u32 s11, 3")
        e("s_cselect_b64 vcc, -1, 0")
    e("s_cmp_lg_u32 s3, 11")
    e("s_cbranch_scc1 L_noinit")
    e("v_mov_b32 v8, 0"); e("v_mov_b32 v9, 0")
    e("ds_write_b64 v8, v[8:9]")
    e("s_waitcnt lgkmcnt(0)")
    e("L_noinit:")
    e("s_barrier")
    e("s_waitcnt lgkmcnt(0)")
    srd_p(32, 18); srd_p(36, 20)
    n = 0
    for i in range(16):
        if i % 4 == 0 and i: e(f"s_xor_b32 s11, s10, {(i//4)*4096}")
        r = KB + 4*i
        e(f"buffer_load_dwordx4 v[{r}:{r+3}], v1, s[32:35], {'s11' if i >= 4 else 's10'} offen offset:{(i%4)*1024} nt")
        n += 1
        if cfg.nk_thr is not None and n > cfg.nk_thr and not (cfg.alt and n % 2): thr(cfg.nk_thr)
        if n % 2 == 0 and n < 16: stamp(5 + n // 2)
    if cfg.stamps:
        for j in (13, 14, 15):
            e(f"s_mov_b64 s[{64+2*j}:{65+2*j}], 0")
    stamp(1)
    e("v_mov_b32 v5, 0")
    e(f"s_mov_b32 s12, {cfg.spin_max}")
    npre = min(16, cfg.nv_pre + cfg.nv_extra)
    def vload(i):
        if i % 4 == 0 or i == npre: e(f"s_xor_b32 s13, s10, {(i//4)*4096}")
        r = VB + 4*i
        e(f"buffer_load_dwordx4 v[{r}:{r+3}], v2, s[36:39], s13 offen offset:{(i%4)*1024} nt")
    for i in range(npre):
        vload(i)
        if cfg.nv_thr is not None and i < cfg.nv_pre: thr(cfg.nv_thr)
    stamp(2)
    e("s_mov_b32 s8, 0x05040100")
    e("s_mov_b32 s9, 0x07060302")
    e("s_mov_b32 s14, 0x3e0293ee")
    e("L_tq:")
    e(f"ds_read_b32 v6, v5 offset:{L_FLAG+4}")
    e("s_waitcnt lgkmcnt(0)")
    e("v_readfirstlane_b32 s11, v6")
    e("s_sub_u32 s12, s12, 1")
    e("s_cbranch_scc1 L_tq_done")
    e("s_cmp_eq_u32 s11, 1")
    e("s_cbranch_scc1 L_tq_done")
    e("s_sleep 1")
    e("s_branch L_tq")
    e("L_tq_done:")
    e(f"ds_read_b128 v[{QB}:{QB+3}], v2 offset:{L_Q}")
    e(f"s_waitcnt vmcnt({npre}) lgkmcnt(0)")
    stamp(3)
    D = lambda l: DT if l == 0 else KB + 4*(l-1)
    def red12(l):
        tb = (l >> 1) & 3; t2 = tb ^ 1
        dpp("v_add_f32", D(l)+tb, D(l)+(tb^2), D(l)+tb, "row_ror:8")
        dpp("v_add_f32", D(l)+t2, D(l)+(t2^2), D(l)+t2, "row_ror:8")
    def red3(l):
        tb = (l >> 1) & 3; t2 = tb ^ 1
        dpp("v_add_f32", RB + (l >> 3)*2 + (l & 1), D(l)+t2, D(l)+tb, f"row_ror:{4*((tb-t2)&3)}", 1 << tb)
    LAG = 4
    for l in range(16 + LAG + 1):
        if l < 16:
            a = KB + 4*l
            e(f"v_mfma_f32_16x16x32_bf16 v[{D(l)}:{D(l)+3}], v[{a}:{a+3}], v[{QB}:{QB+3}], 0")
            if l < LAG: e("s_nop 1")
        if 0 <= l - LAG < 16: red12(l - LAG)
        if 0 <= l - LAG - 1 < 16: red3(l - LAG - 1)
        if l == 16 + LAG - 1: e("s_nop 0")
    e("s_mov_b32 s48, 0x000f000f"); e("s_mov_b32 s49, 0x000f000f")
    e("s_mov_b32 s50, 0x00f000f0"); e("s_mov_b32 s51, 0x00f000f0")
    e(f"v_max3_f32 v5, v{RB}, v{RB+1}, v{RB+2}")
    e(f"v_max_f32 v5, v5, v{RB+3}")
    e("s_mov_b32 s52, 0x0f000f00"); e("s_mov_b32 s53, 0x0f000f00")
    dpp("v_max_f32", 5, 5, 5, "row_ror:8")
    e("s_mov_b32 s54, 0xf000f000"); e("s_mov_b32 s55, 0xf000f000")
    dpp("v_max_f32", 5, 5, 5, "row_ror:4")
    e("v_mov_b32 v6, v5")
    e("s_nop 1")
    e("v_permlane32_swap_b32 v5, v6")
    e("v_max_f32 v5, v5, v6")
    e("v_mov_b32 v6, v5")
    e("s_nop 1")
    e("v_permlane16_swap_b32 v5, v6")
    e("v_max_f32 v5, v5, v6")
    e("v_mul_f32 v6, s14, v5")
    for i in range(4):
        e(f"v_fma_f32 v{RB+i}, v{RB+i}, s14, -v6")
    for i in range(4):
        e(f"v_exp_f32 v{RB+i}, v{RB+i}")
    for i in range(npre, 16):
        vload(i)
    if npre == 16: e("s_nop 0")
    e(f"v_cvt_pk_bf16_f32 v{CB}, v{RB}, v{RB+1}")
    e(f"v_cvt_pk_bf16_f32 v{CB+1}, v{RB+2}, v{RB+3}")
    e(f"v_add_f32 v7, v{RB}, v{RB+1}")
    e(f"v_add_f32 v5, v{RB+2}, v{RB+3}")
    e("v_add_f32 v7, v7, v5")
    PM = KB
    for u in range(2):
        for k in range(4):
            e(f"v_cndmask_b32 v{PM+16*u+4*k+k}, 0, v{CB+u}, s[{48+2*k}:{49+2*k}]")
        dpp("v_add_f32", 7, 7, 7, f"row_ror:{8 >> u}")
    e("v_mov_b32 v5, v7")
    cnt = 0
    for u in range(2):
        for q4 in range(4):
            for k in range(4):
                if k == q4: continue
                dpp("v_mov_b32", PM+16*u+4*q4+k, PM+16*u+4*k+k, None, f"row_ror:{4*((q4-k)&3)}")
                cnt += 1
                if cnt == 2:
                    e("v_permlane32_swap_b32 v7, v5"); e("v_add_f32 v7, v7, v5"); e("v_mov_b32 v5, v7")
                if cnt == 4:
                    e("v_permlane16_swap_b32 v7, v5"); e("v_add_f32 v7, v7, v5")
                    e("s_lshl_b32 s11, s6, 3")
                    e("v_lshl_add_u32 v3, v3, 6, s11")
                    e(f"ds_write_b64 v3, v[6:7] offset:{L_ML}")
    e("s_lshl_b32 s11, s6, 11")
    e("v_lshl_add_u32 v3, v0, 4, s11")
    stamp(4)
    for u in range(2):
        TB = KB + 32 if u == 0 else VB
        for ip in range(4):
            rem = 16 - (8*u + 2*ip + 2)
            e(f"s_waitcnt vmcnt({rem})")
            r0 = VB + 32*u + 8*ip; r1 = r0 + 4
            for w in range(4):
                e(f"v_perm_b32 v{TB+4*(2*w)+ip}, v{r1+w}, v{r0+w}, s8")
                e(f"v_perm_b32 v{TB+4*(2*w+1)+ip}, v{r1+w}, v{r0+w}, s9")
        for j in (0, 1, 4, 2, 5, 3, 6, 7):
            a = ACC + 4*(j >> 2)
            src = "0" if (u == 0 and (j & 3) == 0) else f"v[{a}:{a+3}]"
            b = PM + 16*u + 4*(j & 3)
            e(f"v_mfma_f32_16x16x32_bf16 v[{a}:{a+3}], v[{TB+4*j}:{TB+4*j+3}], v[{b}:{b+3}], {src}")
    e("s_nop 5")
    e(f"ds_write_b128 v3, v[{ACC}:{ACC+3}] offset:{L_PART}")
    e("s_nop 0")
    e(f"ds_write_b128 v3, v[{ACC+4}:{ACC+7}] offset:{L_PART+1024}")
    e("s_waitcnt lgkmcnt(0)")
    stamp(5)
    e("s_barrier")
    if cfg.stamps:
        e("s_barrier")
    write_stamps()
    e("s_endpgm")

    e("L_helper2:")
    if cfg.stamps:
        for j in range(1, NST):
            e(f"s_mov_b64 s[{64+2*j}:{65+2*j}], 0")
    stamp(13)
    e("s_mov_b32 s8, 0x05040100")
    e("s_mov_b32 s9, 0x07060302")
    srd_p(52, 26); srd_c(52, 0x8000)
    e("s_mov_b32 s56, 0x55555555"); e("s_mov_b32 s57, 0x55555555")
    e("s_lshl_b32 s12, s58, 7"); e("s_add_u32 s12, s12, s4"); e("s_lshl_b32 s12, s12, 13")
    e("s_add_u32 s10, s10, s12"); e(f"s_add_u32 s10, s10, {S_O}")
    e("v_lshl_add_u32 v5, v3, 16, v7")
    e("s_lshl_b32 s63, s3, 18"); e("s_add_u32 s63, s63, s12"); e("s_add_u32 s63, s63, s14")
    e("s_lshl_b32 s11, s59, 10"); e("s_add_u32 s63, s63, s11")
    e("v_lshlrev_b32 v162, 16, v1"); e("v_lshl_add_u32 v162, v3, 3, v162")
    e("s_lshl_b32 s11, s3, 8"); e("s_add_u32 s96, s62, s11"); e(f"s_add_u32 s96, s96, {S_O}")
    e("v_lshlrev_b32 v160, 2, v0")
    e("s_lshl_b32 s14, s58, 7"); e("s_lshr_b32 s11, s3, 1"); e("s_lshl_b32 s11, s11, 6"); e("s_add_u32 s14, s14, s11")
    e("s_lshl_b32 s11, s7, 3"); e("s_add_u32 s14, s14, s11")
    e("s_and_b32 s11, s3, 1"); e("s_lshl_b32 s11, s11, 2"); e("s_add_u32 s14, s14, s11")
    e("s_lshl_b32 s14, s14, 13")
    e("s_lshl_b32 s11, s4, 1"); e("s_add_u32 s11, s11, s59"); e("s_lshl_b32 s11, s11, 8"); e("s_add_u32 s14, s14, s11")
    e(f"s_add_u32 s14, s14, {S_P}")
    e("v_lshlrev_b32 v161, 13, v1"); e("v_lshl_add_u32 v161, v3, 4, v161")
    e("s_mov_b32 s58, 0x11111111"); e("s_mov_b32 s59, 0x11111111")
    e("v_mov_b32 v152, 0"); e("v_mov_b32 v153, 1")
    e("v_mul_u32_u24 v149, 288, v1")
    e("v_lshl_add_u32 v149, v3, 4, v149")
    e("s_mul_i32 s11, s3, 5120")
    e("v_add_u32 v149, s11, v149")
    e("v_bfe_u32 v150, v0, 2, 2")
    e("v_mul_u32_u24 v150, 288, v150")
    e("v_add_u32 v150, v150, v7")
    e("v_and_b32 v151, 3, v0")
    e("v_lshl_add_u32 v150, v151, 2, v150")
    e("s_lshl_b32 s11, s3, 6"); e(f"s_add_u32 s11, s11, {L_RED}")
    e("v_add_u32 v150, s11, v150")

    def transpose(W, T, nafter, thr):
        for r in range(2):
            for ip in range(4):
                rem = 16 - (8*r + 2*ip + 2) + nafter
                if rem <= thr: e(f"s_waitcnt vmcnt({rem})")
                r0 = W + 16*r + 4*ip; r1 = r0 + 2
                for w in range(2):
                    e(f"v_perm_b32 v{T+16*r+4*(2*w)+ip}, v{r1+w}, v{r0+w}, s8")
                    e(f"v_perm_b32 v{T+16*r+4*(2*w+1)+ip}, v{r1+w}, v{r0+w}, s9")
    AC = 8
    def proj_mfma(T):
        for r in range(2):
            for j in range(4):
                a = AC + 4*j
                src = "0" if r == 0 else f"v[{a}:{a+3}]"
                t = T + 16*r + 4*j
                e(f"v_mfma_f32_16x16x32_bf16 v[{a}:{a+3}], v[{t}:{t+3}], v[{XB+4*r}:{XB+4*r+3}], {src}")
        e("s_nop 4")
        for j in range(4):
            a = AC + 4*j
            e(f"ds_write_b128 v149, v[{a}:{a+3}] offset:{L_RED + 1280*j}")
    def reduce():
        for w in range(4):
            for jp in range(2):
                e(f"ds_read2st64_b32 v[{24+4*w+2*jp}:{25+4*w+2*jp}], v150 offset0:{5*(4*w+2*jp)} offset1:{5*(4*w+2*jp+1)}")
        e("s_waitcnt lgkmcnt(4)")
        e("v_pk_add_f32 v[24:25], v[24:25], v[28:29]")
        e("v_pk_add_f32 v[26:27], v[26:27], v[30:31]")
        e("s_waitcnt lgkmcnt(0)")
        e("v_pk_add_f32 v[32:33], v[32:33], v[36:37]")
        e("v_pk_add_f32 v[34:35], v[34:35], v[38:39]")
        e("v_pk_add_f32 v[24:25], v[24:25], v[32:33]")
        e("v_pk_add_f32 v[26:27], v[26:27], v[34:35]")
    def gather4(r):
        e("s_nop 1")
        dpp("v_mov_b32", r+1, r, None, "quad_perm:[1,1,1,1]")
        dpp("v_mov_b32", r+2, r, None, "quad_perm:[2,2,2,2]")
        dpp("v_mov_b32", r+3, r, None, "quad_perm:[3,3,3,3]")
    def gather2(r):
        e("s_nop 1")
        dpp("v_mov_b32", r+2, r, None, "quad_perm:[1,1,3,3]")
        dpp("v_mov_b32", r+3, r+1, None, "quad_perm:[1,1,3,3]")

    transpose(WQ, TQ, 1, cfg.h_thr)
    e("s_nop 0")
    stamp(1)
    proj_mfma(TQ)
    e(f"s_mov_b32 s15, {cfg.spin_max}")
    e("s_waitcnt vmcnt(0)")
    e("L_gc:")
    e("v_cmp_gt_u32 vcc, 8, v154")
    e("s_cbranch_vccz L_gc_done")
    e("s_sub_u32 s15, s15, 1")
    e("s_cbranch_scc1 L_gc_done")
    e("s_sleep 16")
    e("buffer_load_dword v154, v156, s[48:51], 0 offen sc1")
    e("s_waitcnt vmcnt(0)")
    e("s_branch L_gc")
    e("L_gc_done:")
    stamp(4)
    e("s_waitcnt lgkmcnt(0)")
    e("s_mov_b64 exec, 1")
    e(f"ds_add_u32 v152, v153 offset:{L_FLAG}")
    e("s_mov_b64 exec, -1")
    e("L_hs1:")
    e(f"ds_read_b32 v154, v152 offset:{L_FLAG}")
    e("s_waitcnt lgkmcnt(0)")
    e("v_readfirstlane_b32 s11, v154")
    e("s_sub_u32 s15, s15, 1")
    e("s_cbranch_scc1 L_hs1_done")
    e("s_cmp_lt_u32 s11, 4")
    e("s_cbranch_scc1 L_hs1")
    e("L_hs1_done:")
    reduce()
    e("v_cvt_pk_bf16_f32 v164, v24, v25")
    e("v_cvt_pk_bf16_f32 v165, v26, v27")
    e("v_min_u32 v164, -2, v164")
    e("v_min_u32 v165, -2, v165")
    gather2(164)
    e("s_mov_b64 exec, s[56:57]")
    e("buffer_store_dwordx4 v[164:167], v162, s[44:47], s63 offen sc1")
    e("s_mov_b64 exec, -1")
    stamp(2)
    def woload(n):
        r, i = n >> 3, n & 7
        d = WO + 16*r + 2*i
        rows = (i >> 2)*128 + (i & 3)*8
        e(f"s_add_u32 s11, s13, {rows*1024}")
        e(f"buffer_load_dwordx2 v[{d}:{d+1}], v4, s[40:43], s11 offen offset:{r*2048} nt")
        if n >= cfg.ho_thr and n < 15: e(f"s_waitcnt vmcnt({cfg.ho_thr})")
    for n in range(cfg.qpoll_at): woload(n)
    e("s_cmp_lg_u32 s3, 0")
    e("s_cbranch_scc1 L_noq")
    e("v_bfe_u32 v157, v0, 2, 2")
    e("v_lshl_add_u32 v157, v1, 2, v157")
    e("v_lshlrev_b32 v157, 4, v157")
    e("v_lshl_add_u32 v157, v151, 8, v157")
    e("L_qp:")
    e("buffer_load_dwordx4 v[8:11], v157, s[44:47], s62 offen sc1")
    e("buffer_load_dwordx4 v[12:15], v157, s[44:47], s62 offen offset:1024 sc1")
    e("s_waitcnt vmcnt(0)")
    e("v_max3_u32 v16, v8, v9, v10")
    e("v_max3_u32 v17, v11, v12, v13")
    e("v_max3_u32 v16, v16, v14, v15")
    e("v_max_u32 v16, v16, v17")
    e("v_cmp_eq_u32 vcc, -1, v16")
    e("s_sub_u32 s15, s15, 1")
    e("s_cbranch_scc1 L_qp_done")
    e("s_cbranch_vccnz L_qp")
    e("L_qp_done:")
    for k in range(4):
        e(f"v_lshlrev_b32 v16, 16, v{8+k}"); e(f"v_lshlrev_b32 v17, 16, v{12+k}")
        e(f"v_and_b32 v18, 0xffff0000, v{8+k}"); e(f"v_and_b32 v19, 0xffff0000, v{12+k}")
        e("v_add_f32 v16, v16, v17"); e("v_add_f32 v18, v18, v19")
        e(f"v_cvt_pk_bf16_f32 v{20+k}, v16, v18")
    e(f"ds_write_b128 v155, v[20:23] offset:{L_Q}")
    e("s_waitcnt lgkmcnt(0)")
    e(f"ds_write_b32 v152, v153 offset:{L_FLAG+4}")
    stamp(5)
    e("L_noq:")
    for n in range(cfg.qpoll_at, 16): woload(n)
    transpose(WO, TO, 0, cfg.ho_thr)
    stamp(3)
    e("s_lshl_b32 s11, s3, 9")
    e("v_lshl_add_u32 v6, v0, 3, s11")
    e("v_bfe_u32 v7, v0, 1, 2")
    e("v_lshlrev_b32 v7, 6, v7")
    e("s_lshl_b32 s12, s6, 3"); e("s_add_u32 s12, s12, s4"); e("s_lshl_b32 s12, s12, 10")
    e("s_lshl_b32 s11, s7, 7"); e("s_add_u32 s12, s12, s11")
    e("v_lshrrev_b32 v157, 5, v0")
    e("v_lshlrev_b32 v156, 3, v3")
    e("v_lshl_add_u32 v156, v157, 2, v156")
    e(f"s_mov_b32 s15, {cfg.spin_max}")
    e("s_waitcnt lgkmcnt(0)")
    stamp(6)
    e("s_barrier")
    stamp(7)
    for k in range(4):
        e(f"ds_read_b128 v[{8+4*k}:{11+4*k}], v7 offset:{L_ML+16*k}")
    for w in range(8):
        e(f"ds_read_b64 v[{24+2*w}:{25+2*w}], v6 offset:{L_PART+2048*w}")
    e("s_waitcnt lgkmcnt(8)")
    e("v_max3_f32 v40, v8, v10, v12")
    e("v_max3_f32 v41, v14, v16, v18")
    e("v_max3_f32 v40, v40, v20, v22")
    e("v_max_f32 v40, v40, v41")
    for w in range(8):
        e(f"v_sub_f32 v{8+2*w}, v{8+2*w}, v40")
    for w in range(8):
        e(f"v_exp_f32 v{8+2*w}, v{8+2*w}")
    e("v_mul_f32 v41, v8, v9")
    e("v_mul_f32 v42, v10, v11")
    for w in range(2, 8):
        e(f"v_fmac_f32 v{41+(w&1)}, v{8+2*w}, v{9+2*w}")
    e("v_add_f32 v41, v41, v42")
    e("v_rcp_f32 v41, v41")
    e("s_waitcnt lgkmcnt(0)")
    e("v_mul_f32 v44, v24, v8"); e("v_mul_f32 v45, v25, v8")
    e("v_mul_f32 v46, v26, v10"); e("v_mul_f32 v47, v27, v10")
    for w in range(2, 8):
        d = 44 + 2*(w & 1)
        e(f"v_fmac_f32 v{d}, v{24+2*w}, v{8+2*w}"); e(f"v_fmac_f32 v{d+1}, v{25+2*w}, v{8+2*w}")
    e("v_add_f32 v44, v44, v46"); e("v_add_f32 v45, v45, v47")
    e("v_mul_f32 v44, v44, v41"); e("v_mul_f32 v45, v45, v41")
    e("v_cvt_pk_bf16_f32 v44, v44, v45")
    e("v_min_u32 v44, -2, v44")
    gather4(44)
    e("s_mov_b64 exec, s[58:59]")
    e("buffer_store_dwordx4 v[44:47], v160, s[44:47], s96 offen sc1")
    e("s_mov_b64 exec, -1")
    stamp(8)
    e("L_op:")
    e(f"buffer_load_dwordx4 v[{XB}:{XB+3}], v5, s[44:47], s10 offen sc1")
    e(f"buffer_load_dwordx4 v[{XB+4}:{XB+7}], v5, s[44:47], s10 offen offset:64 sc1")
    e("s_waitcnt vmcnt(0)")
    e(f"v_max3_u32 v40, v{XB}, v{XB+1}, v{XB+2}")
    e(f"v_max3_u32 v41, v{XB+3}, v{XB+4}, v{XB+5}")
    e(f"v_max3_u32 v40, v40, v{XB+6}, v{XB+7}")
    e("v_max_u32 v40, v40, v41")
    e("v_cmp_eq_u32 vcc, -1, v40")
    e("s_sub_u32 s15, s15, 1")
    e("s_cbranch_scc1 L_op_done")
    e("s_cbranch_vccnz L_op")
    e("L_op_done:")
    stamp(9)
    proj_mfma(TO)
    e("s_waitcnt lgkmcnt(0)")
    e("s_barrier")
    reduce()
    for k in range(4): e(f"v_min_u32 v{24+k}, -2, v{24+k}")
    e("buffer_store_dwordx4 v[24:27], v161, s[44:47], s14 offen sc1")
    stamp(10)
    e("s_cmp_lg_u32 s3, 0")
    e("s_cbranch_scc1 L_hend")
    e(f"s_mov_b32 s15, {cfg.spin_max}")
    e("L_fp:")
    for k in range(4):
        e(f"buffer_load_dwordx4 v[{8+4*k}:{11+4*k}], v155, s[44:47], s60 offen offset:{1024*k} sc1")
    e("s_waitcnt vmcnt(0)")
    e("v_max3_u32 v40, v8, v9, v10")
    e("v_max3_u32 v41, v11, v12, v13")
    e("v_max3_u32 v42, v14, v15, v16")
    e("v_max3_u32 v43, v17, v18, v19")
    e("v_max3_u32 v40, v40, v20, v21")
    e("v_max3_u32 v41, v41, v22, v23")
    e("v_max3_u32 v40, v40, v42, v43")
    e("v_max_u32 v40, v40, v41")
    e("v_cmp_eq_u32 vcc, -1, v40")
    e("s_sub_u32 s15, s15, 1")
    e("s_cbranch_scc1 L_fp_done")
    e("s_cbranch_vccnz L_fp")
    e("L_fp_done:")
    stamp(11)
    e("v_pk_add_f32 v[8:9], v[8:9], v[12:13]")
    e("v_pk_add_f32 v[10:11], v[10:11], v[14:15]")
    e("v_pk_add_f32 v[16:17], v[16:17], v[20:21]")
    e("v_pk_add_f32 v[18:19], v[18:19], v[22:23]")
    e("v_pk_add_f32 v[8:9], v[8:9], v[16:17]")
    e("v_pk_add_f32 v[10:11], v[10:11], v[18:19]")
    e("s_nop 1")
    e("v_permlane32_swap_b32 v8, v10")
    e("v_permlane32_swap_b32 v9, v11")
    e("v_add_f32 v8, v8, v10")
    e("v_add_f32 v9, v9, v11")
    e("v_mov_b32 v10, v8"); e("v_mov_b32 v11, v9")
    e("s_nop 1")
    e("v_permlane16_swap_b32 v8, v10")
    e("v_permlane16_swap_b32 v9, v11")
    e("v_add_f32 v8, v8, v10")
    e("v_add_f32 v9, v9, v11")
    e("v_cvt_pk_bf16_f32 v8, v8, v9")
    e("s_mov_b32 exec_lo, 0x0000ffff"); e("s_mov_b32 exec_hi, 0x0000ffff")
    e("buffer_store_dword v8, v156, s[52:55], s12 offen")
    if cfg.stamps:
        e("s_waitcnt vmcnt(0)")
    stamp(12)
    e("L_hend:")
    write_stamps()
    e("L_end:")
    e("s_endpgm")

    body = "\n".join(x if x.endswith(":") else "    " + x for x in L)
    return (HDR + f"; @launch grid=(256,1,1) block=(768,1,1) lds={LDS_BYTES}\n"
        + f""".amdgcn_target "amdgcn-amd-amdhsa--gfx950"
.text
.globl {KN}_kernel
.p2align 8
.type {KN}_kernel,@function
{KN}_kernel:
""" + body + f"""
.section .rodata,"a"
.p2align 6
.amdhsa_kernel {KN}_kernel
  .amdhsa_next_free_vgpr 168
  .amdhsa_next_free_sgpr 102
  .amdhsa_accum_offset 168
  .amdhsa_group_segment_fixed_size 0
  .amdhsa_kernarg_size 64
  .amdhsa_user_sgpr_count 2
  .amdhsa_user_sgpr_kernarg_segment_ptr 1
  .amdhsa_system_sgpr_workgroup_id_x 1
.end_amdhsa_kernel
""")

if __name__ == "__main__":
    cfg = Cfg()
    out = sys.argv[1]
    for kv in sys.argv[2:]:
        k, v = kv.split("=")
        assert hasattr(cfg, k), k
        if v == "None": v = None
        elif v in ("True", "False"): v = (v == "True")
        else:
            try: v = int(v, 0)
            except ValueError: v = v.replace("+", " ")
        setattr(cfg, k, v)
    txt = gen(cfg)
    import os
    sys.path.insert(0, os.path.dirname(__file__))
    import hazcheck
    assert hazcheck.check(txt) == 0
    open(out, "w").write(txt)
```

```python
import sys, math
KN = "standalone__sliding_block_cached__sampling"

HDR = """; Kernarg layout for this problem (64 bytes, ptrs only, base s[0:1]):
;   offset   0: d_in[0] x  shape=(32, 1, 512) dtype=bfloat16 strides=(1024, 1024, 2) contiguous=True
;   offset   8: d_in[1] k_cache  shape=(32, 8, 2048, 128) dtype=bfloat16 strides=(4194304, 524288, 256, 2) contiguous=True
;   offset  16: d_in[2] v_cache  shape=(32, 8, 2048, 128) dtype=bfloat16 strides=(4194304, 524288, 256, 2) contiguous=True
;   offset  24: d_in[3] wq  shape=(512, 4096) dtype=bfloat16 strides=(8192, 2) contiguous=True
;   offset  32: d_in[4] wo  shape=(4096, 512) dtype=bfloat16 strides=(1024, 2) contiguous=True
;   offset  56: d_ws      536870912 bytes workspace
"""

class Cfg:
    stamps = False
    nk_thr = 2
    nv_thr = 2
    nv_pre = 8
    nv_extra = 3
    h_thr = 5
    ho_thr = 3
    qpoll_at = 8
    spin_max = 0x40000
    hprio = 3
    xnt = ""
    alt = False
    boost = 0
    leak = None

WS_USED = 0x200000
STAMP_WS = 0x10000000
L_FLAG = 0
L_ML = 256
L_Q = 512
L_PART = 1536
L_RED = L_PART + 16384
LDS_BYTES = L_RED + 16 * 1280
S_Q, S_O, S_P = 0, 2048, 4096
NST = 16

def gen(cfg):
    L = []
    e = L.append
    lk = [int(x) for x in cfg.leak.split(",")] if cfg.leak else None
    def stamp(i):
        if cfg.stamps or (lk and i in lk[:2]):
            e(f"s_memrealtime s[{64+2*i}:{65+2*i}]")
    def srd_c(d, size):
        e(f"s_mov_b32 s{d+2}, {size:#x}"); e(f"s_mov_b32 s{d+3}, 0x20000")
    def srd_p(d, lo):
        e(f"s_mov_b64 s[{d}:{d+1}], s[{lo}:{lo+1}]")
    def write_stamps():
        if not cfg.stamps: return
        e("s_waitcnt lgkmcnt(0) vmcnt(0)")
        srd_p(56, 30); srd_c(56, 0x20000000)
        e("s_mul_i32 s60, s2, 12"); e("s_add_u32 s60, s60, s3"); e(f"s_mul_i32 s60, s60, {NST*8}")
        e(f"s_add_u32 s60, s60, {STAMP_WS:#x}")
        e("s_mov_b64 exec, 1")
        e("v_mov_b32 v2, 0")
        for j in range(NST):
            e(f"v_mov_b32 v4, s{64+2*j}"); e(f"v_mov_b32 v5, s{65+2*j}")
            e(f"buffer_store_dwordx2 v[4:5], v2, s[56:59], s60 offen offset:{8*j}")
            e("s_waitcnt vmcnt(0)")
    def dpp(op, d, s0, s1, ctl, bank=0xf):
        if s1 is None: e(f"{op}_dpp v{d}, v{s0} {ctl} row_mask:0xf bank_mask:{bank:#x}")
        else: e(f"{op}_dpp v{d}, v{s0}, v{s1} {ctl} row_mask:0xf bank_mask:{bank:#x}")

    KB, VB, QB, DT, RB, CB, ACC = 8, 72, 136, 140, 144, 148, 152
    stamp(0)
    e("s_load_dwordx16 s[16:31], s[0:1], 0")
    e("v_lshrrev_b32 v1, 6, v0")
    e("s_cmp_ge_u32 s2, 256")
    e("s_cbranch_scc1 L_end")
    e("v_readfirstlane_b32 s3, v1")
    e("v_and_b32 v0, 63, v0")
    e("s_and_b32 s4, s2, 7")
    e("s_lshr_b32 s5, s2, 3")
    e("s_lshl_b32 s62, s2, 13")
    srd_c(44, WS_USED)
    e("s_cmp_ge_u32 s3, 4")
    e("s_cbranch_scc1 L_attn")

    WQ, WO, TQ, TO, XB = 8, 40, 72, 104, 136
    if cfg.hprio: e(f"s_setprio {cfg.hprio}")
    e("s_lshr_b32 s6, s5, 3")
    e("s_and_b32 s7, s5, 7")
    e("s_and_b32 s59, s6, 1")
    e("s_lshr_b32 s58, s6, 1")
    e("v_lshrrev_b32 v1, 4, v0")
    e("v_and_b32 v3, 15, v0")
    e("v_lshlrev_b32 v7, 4, v1")
    e("v_lshl_add_u32 v5, v3, 10, v7")
    e("v_lshlrev_b32 v6, 16, v1")
    e("v_lshl_add_u32 v6, v3, 3, v6")
    e("v_and_b32 v4, 1, v1"); e("v_lshlrev_b32 v4, 8, v4")
    e("v_lshrrev_b32 v2, 1, v1"); e("v_add_u32 v4, v4, v2")
    e("v_lshlrev_b32 v4, 10, v4"); e("v_lshl_add_u32 v4, v3, 3, v4")
    e("s_lshl_b32 s63, s58, 14"); e("s_lshl_b32 s11, s59, 9"); e("s_add_u32 s63, s63, s11")
    e("s_lshl_b32 s10, s3, 7"); e("s_add_u32 s63, s63, s10"); e("s_add_u32 s10, s10, s11")
    e("s_lshl_b32 s12, s10, 12")
    e("s_lshl_b32 s11, s4, 10"); e("s_add_u32 s12, s12, s11")
    e("s_lshl_b32 s14, s7, 7"); e("s_add_u32 s12, s12, s14")
    e("s_lshl_b32 s13, s4, 19"); e("s_add_u32 s13, s13, s14")
    e("s_lshl_b32 s11, s3, 15"); e("s_add_u32 s13, s13, s11")
    e("s_lshl_b32 s11, s59, 12"); e("s_add_u32 s13, s13, s11")
    srd_c(32, 0x8000); srd_c(36, 0x400000); srd_c(40, 0x400000); srd_c(48, 256)
    for r in range(144, 148): e(f"v_mov_b32 v{r}, -1")
    e("v_lshlrev_b32 v155, 4, v0")
    e("v_and_b32 v156, 31, v0"); e("v_lshlrev_b32 v156, 3, v156")
    e("s_and_b32 s15, s2, 31"); e("s_lshl_b32 s15, s15, 3")
    e("s_mov_b32 s61, 1")
    e(f"s_add_u32 s60, s62, {S_P}")
    e("s_barrier")
    e("s_cmp_lg_u32 s3, 0")
    e("s_waitcnt lgkmcnt(0)")
    srd_p(36, 22); srd_p(44, 30); srd_p(32, 16); srd_p(40, 24); srd_p(48, 28)
    e("s_cbranch_scc1 L_noclear")
    for k in range(3):
        e(f"buffer_store_dwordx4 v[144:147], v155, s[44:47], s62 offen offset:{1024*k} sc1")
    for k in range(4):
        e(f"buffer_store_dwordx4 v[144:147], v155, s[44:47], s60 offen offset:{1024*k} sc1")
    e("L_noclear:")
    seq = [("x", 0, 0), ("x", 1, 0)] + [("wq", r, i) for r in range(2) for i in range(8)] + [("chk", 0, 0)]
    pos = {}
    for n, (k, r, i) in enumerate(seq):
        pos[(k, r, i)] = n
        if k == "wq":
            d = WQ + 16*r + 2*i
            if r or i: e(f"s_add_u32 s11, s12, {(r*32+i)*8192}")
            e(f"buffer_load_dwordx2 v[{d}:{d+1}], v6, s[36:39], {'s11' if (r or i) else 's12'} offen nt")
        elif k == "wo":
            d = WO + 16*r + 2*i
            rows = (i >> 2)*128 + (i & 3)*8
            e(f"s_add_u32 s11, s13, {rows*1024}")
            e(f"buffer_load_dwordx2 v[{d}:{d+1}], v4, s[40:43], s11 offen offset:{r*2048} nt")
        elif k == "x":
            e(f"buffer_load_dwordx4 v[{XB+4*r}:{XB+4*r+3}], v5, s[32:35], s63 offen offset:{64*r} {cfg.xnt}")
        else:
            e("buffer_load_dword v154, v156, s[48:51], 0 offen sc1")
        if n >= cfg.h_thr and n < len(seq) - 1: e(f"s_waitcnt vmcnt({cfg.h_thr})")
        if n == cfg.h_thr:
            e("s_cmp_lg_u32 s3, 0")
            e("s_cbranch_scc1 L_noarr")
            e("s_atomic_add s61, s[28:29], s15 glc")
            e("L_noarr:")
    NSEQ = len(seq)
    e("s_branch L_helper2")

    e("L_attn:")
    e("s_sub_u32 s6, s3, 4")
    e("s_lshl_b32 s10, s2, 19")
    e("s_lshl_b32 s11, s6, 14")
    e("s_add_u32 s10, s10, s11")
    e(f"s_add_u32 s10, s10, {1536*256}")
    e("s_lshl_b32 s11, s5, 12")
    e("s_xor_b32 s10, s10, s11")
    e("v_and_b32 v3, 3, v0")
    e("v_bfe_u32 v4, v0, 2, 2")
    e("v_lshrrev_b32 v5, 4, v0")
    e("v_lshlrev_b32 v5, 6, v5")
    e("v_lshl_add_u32 v1, v4, 8, v5")
    e("v_lshl_add_u32 v1, v3, 4, v1")
    e("v_lshlrev_b32 v2, 4, v0")
    srd_c(32, 0x8000000); srd_c(36, 0x8000000)
    tcount = [0]
    def thr(n):
        if cfg.boost:
            tcount[0] += 1
            e(f"s_waitcnt vmcnt({n + cfg.boost})")
            e(f"s_cbranch_vccnz L_thr{tcount[0]}")
            e(f"s_waitcnt vmcnt({n})")
            e(f"L_thr{tcount[0]}:")
        else:
            e(f"s_waitcnt vmcnt({n})")
    if cfg.boost:
        e("s_and_b32 s11, s5, 7")
        e("s_cmp_eq_u32 s11, 3")
        e("s_cselect_b64 vcc, -1, 0")
    e("s_cmp_lg_u32 s3, 11")
    e("s_cbranch_scc1 L_noinit")
    e("v_mov_b32 v8, 0"); e("v_mov_b32 v9, 0")
    e("ds_write_b64 v8, v[8:9]")
    e("s_waitcnt lgkmcnt(0)")
    e("L_noinit:")
    e("s_barrier")
    e("s_waitcnt lgkmcnt(0)")
    srd_p(32, 18); srd_p(36, 20)
    n = 0
    for i in range(16):
        if i % 4 == 0 and i: e(f"s_xor_b32 s11, s10, {(i//4)*4096}")
        r = KB + 4*i
        e(f"buffer_load_dwordx4 v[{r}:{r+3}], v1, s[32:35], {'s11' if i >= 4 else 's10'} offen offset:{(i%4)*1024} nt")
        n += 1
        if cfg.nk_thr is not None and n > cfg.nk_thr and not (cfg.alt and n % 2): thr(cfg.nk_thr)
        if n % 2 == 0 and n < 16: stamp(5 + n // 2)
    if cfg.stamps:
        for j in (13, 14, 15):
            e(f"s_mov_b64 s[{64+2*j}:{65+2*j}], 0")
    stamp(1)
    e("v_mov_b32 v5, 0")
    e(f"s_mov_b32 s12, {cfg.spin_max}")
    npre = min(16, cfg.nv_pre + cfg.nv_extra)
    def vload(i):
        if i % 4 == 0 or i == npre: e(f"s_xor_b32 s13, s10, {(i//4)*4096}")
        r = VB + 4*i
        e(f"buffer_load_dwordx4 v[{r}:{r+3}], v2, s[36:39], s13 offen offset:{(i%4)*1024} nt")
    for i in range(npre):
        vload(i)
        if cfg.nv_thr is not None and i < cfg.nv_pre: thr(cfg.nv_thr)
    stamp(2)
    e("s_mov_b32 s8, 0x05040100")
    e("s_mov_b32 s9, 0x07060302")
    e("s_mov_b32 s14, 0x3e0293ee")
    e("L_tq:")
    e(f"ds_read_b32 v6, v5 offset:{L_FLAG+4}")
    e("s_waitcnt lgkmcnt(0)")
    e("v_readfirstlane_b32 s11, v6")
    e("s_sub_u32 s12, s12, 1")
    e("s_cbranch_scc1 L_tq_done")
    e("s_cmp_eq_u32 s11, 1")
    e("s_cbranch_scc1 L_tq_done")
    e("s_sleep 1")
    e("s_branch L_tq")
    e("L_tq_done:")
    e(f"ds_read_b128 v[{QB}:{QB+3}], v2 offset:{L_Q}")
    e(f"s_waitcnt vmcnt({npre}) lgkmcnt(0)")
    stamp(3)
    D = lambda l: DT if l == 0 else KB + 4*(l-1)
    def red12(l):
        tb = (l >> 1) & 3; t2 = tb ^ 1
        dpp("v_add_f32", D(l)+tb, D(l)+(tb^2), D(l)+tb, "row_ror:8")
        dpp("v_add_f32", D(l)+t2, D(l)+(t2^2), D(l)+t2, "row_ror:8")
    def red3(l):
        tb = (l >> 1) & 3; t2 = tb ^ 1
        dpp("v_add_f32", RB + (l >> 3)*2 + (l & 1), D(l)+t2, D(l)+tb, f"row_ror:{4*((tb-t2)&3)}", 1 << tb)
    LAG = 4
    for l in range(16 + LAG + 1):
        if l < 16:
            a = KB + 4*l
            e(f"v_mfma_f32_16x16x32_bf16 v[{D(l)}:{D(l)+3}], v[{a}:{a+3}], v[{QB}:{QB+3}], 0")
            if l < LAG: e("s_nop 1")
        if 0 <= l - LAG < 16: red12(l - LAG)
        if 0 <= l - LAG - 1 < 16: red3(l - LAG - 1)
        if l == 16 + LAG - 1: e("s_nop 0")
    e("s_mov_b32 s48, 0x000f000f"); e("s_mov_b32 s49, 0x000f000f")
    e("s_mov_b32 s50, 0x00f000f0"); e("s_mov_b32 s51, 0x00f000f0")
    e(f"v_max3_f32 v5, v{RB}, v{RB+1}, v{RB+2}")
    e(f"v_max_f32 v5, v5, v{RB+3}")
    e("s_mov_b32 s52, 0x0f000f00"); e("s_mov_b32 s53, 0x0f000f00")
    dpp("v_max_f32", 5, 5, 5, "row_ror:8")
    e("s_mov_b32 s54, 0xf000f000"); e("s_mov_b32 s55, 0xf000f000")
    dpp("v_max_f32", 5, 5, 5, "row_ror:4")
    e("v_mov_b32 v6, v5")
    e("s_nop 1")
    e("v_permlane32_swap_b32 v5, v6")
    e("v_max_f32 v5, v5, v6")
    e("v_mov_b32 v6, v5")
    e("s_nop 1")
    e("v_permlane16_swap_b32 v5, v6")
    e("v_max_f32 v5, v5, v6")
    e("v_mul_f32 v6, s14, v5")
    for i in range(4):
        e(f"v_fma_f32 v{RB+i}, v{RB+i}, s14, -v6")
    for i in range(4):
        e(f"v_exp_f32 v{RB+i}, v{RB+i}")
    for i in range(npre, 16):
        vload(i)
    if npre == 16: e("s_nop 0")
    e(f"v_cvt_pk_bf16_f32 v{CB}, v{RB}, v{RB+1}")
    e(f"v_cvt_pk_bf16_f32 v{CB+1}, v{RB+2}, v{RB+3}")
    e(f"v_add_f32 v7, v{RB}, v{RB+1}")
    e(f"v_add_f32 v5, v{RB+2}, v{RB+3}")
    e("v_add_f32 v7, v7, v5")
    PM = KB
    for u in range(2):
        for k in range(4):
            e(f"v_cndmask_b32 v{PM+16*u+4*k+k}, 0, v{CB+u}, s[{48+2*k}:{49+2*k}]")
        dpp("v_add_f32", 7, 7, 7, f"row_ror:{8 >> u}")
    e("v_mov_b32 v5, v7")
    cnt = 0
    for u in range(2):
        for q4 in range(4):
            for k in range(4):
                if k == q4: continue
                dpp("v_mov_b32", PM+16*u+4*q4+k, PM+16*u+4*k+k, None, f"row_ror:{4*((q4-k)&3)}")
                cnt += 1
                if cnt == 2:
                    e("v_permlane32_swap_b32 v7, v5"); e("v_add_f32 v7, v7, v5"); e("v_mov_b32 v5, v7")
                if cnt == 4:
                    e("v_permlane16_swap_b32 v7, v5"); e("v_add_f32 v7, v7, v5")
                    e("s_lshl_b32 s11, s6, 3")
                    e("v_lshl_add_u32 v3, v3, 6, s11")
                    e(f"ds_write_b64 v3, v[6:7] offset:{L_ML}")
    e("s_lshl_b32 s11, s6, 11")
    e("v_lshl_add_u32 v3, v0, 4, s11")
    stamp(4)
    for u in range(2):
        TB = KB + 32 if u == 0 else VB
        for ip in range(4):
            rem = 16 - (8*u + 2*ip + 2)
            e(f"s_waitcnt vmcnt({rem})")
            r0 = VB + 32*u + 8*ip; r1 = r0 + 4
            for w in range(4):
                e(f"v_perm_b32 v{TB+4*(2*w)+ip}, v{r1+w}, v{r0+w}, s8")
                e(f"v_perm_b32 v{TB+4*(2*w+1)+ip}, v{r1+w}, v{r0+w}, s9")
        for j in (0, 1, 4, 2, 5, 3, 6, 7):
            a = ACC + 4*(j >> 2)
            src = "0" if (u == 0 and (j & 3) == 0) else f"v[{a}:{a+3}]"
            b = PM + 16*u + 4*(j & 3)
            e(f"v_mfma_f32_16x16x32_bf16 v[{a}:{a+3}], v[{TB+4*j}:{TB+4*j+3}], v[{b}:{b+3}], {src}")
    e("s_nop 5")
    e(f"ds_write_b128 v3, v[{ACC}:{ACC+3}] offset:{L_PART}")
    e("s_nop 0")
    e(f"ds_write_b128 v3, v[{ACC+4}:{ACC+7}] offset:{L_PART+1024}")
    e("s_waitcnt lgkmcnt(0)")
    stamp(5)
    e("s_barrier")
    if cfg.stamps:
        e("s_barrier")
    write_stamps()
    e("s_endpgm")

    e("L_helper2:")
    if cfg.stamps:
        for j in range(1, NST):
            e(f"s_mov_b64 s[{64+2*j}:{65+2*j}], 0")
    stamp(13)
    e("s_mov_b32 s8, 0x05040100")
    e("s_mov_b32 s9, 0x07060302")
    srd_p(52, 26); srd_c(52, 0x8000)
    e("s_mov_b32 s56, 0x55555555"); e("s_mov_b32 s57, 0x55555555")
    e("s_lshl_b32 s12, s58, 7"); e("s_add_u32 s12, s12, s4"); e("s_lshl_b32 s12, s12, 13")
    e("s_add_u32 s10, s10, s12"); e(f"s_add_u32 s10, s10, {S_O}")
    e("v_lshl_add_u32 v5, v3, 16, v7")
    e("s_lshl_b32 s63, s3, 18"); e("s_add_u32 s63, s63, s12"); e("s_add_u32 s63, s63, s14")
    e("s_lshl_b32 s11, s59, 10"); e("s_add_u32 s63, s63, s11")
    e("v_lshlrev_b32 v162, 16, v1"); e("v_lshl_add_u32 v162, v3, 3, v162")
    e("s_lshl_b32 s11, s3, 8"); e("s_add_u32 s96, s62, s11"); e(f"s_add_u32 s96, s96, {S_O}")
    e("v_lshlrev_b32 v160, 2, v0")
    e("s_lshl_b32 s14, s58, 7"); e("s_lshr_b32 s11, s3, 1"); e("s_lshl_b32 s11, s11, 6"); e("s_add_u32 s14, s14, s11")
    e("s_lshl_b32 s11, s7, 3"); e("s_add_u32 s14, s14, s11")
    e("s_and_b32 s11, s3, 1"); e("s_lshl_b32 s11, s11, 2"); e("s_add_u32 s14, s14, s11")
    e("s_lshl_b32 s14, s14, 13")
    e("s_lshl_b32 s11, s4, 1"); e("s_add_u32 s11, s11, s59"); e("s_lshl_b32 s11, s11, 8"); e("s_add_u32 s14, s14, s11")
    e(f"s_add_u32 s14, s14, {S_P}")
    e("v_lshlrev_b32 v161, 13, v1"); e("v_lshl_add_u32 v161, v3, 4, v161")
    e("s_mov_b32 s58, 0x11111111"); e("s_mov_b32 s59, 0x11111111")
    e("v_mov_b32 v152, 0"); e("v_mov_b32 v153, 1")
    e("v_mul_u32_u24 v149, 288, v1")
    e("v_lshl_add_u32 v149, v3, 4, v149")
    e("s_mul_i32 s11, s3, 5120")
    e("v_add_u32 v149, s11, v149")
    e("v_bfe_u32 v150, v0, 2, 2")
    e("v_mul_u32_u24 v150, 288, v150")
    e("v_add_u32 v150, v150, v7")
    e("v_and_b32 v151, 3, v0")
    e("v_lshl_add_u32 v150, v151, 2, v150")
    e("s_lshl_b32 s11, s3, 6"); e(f"s_add_u32 s11, s11, {L_RED}")
    e("v_add_u32 v150, s11, v150")

    def transpose(W, T, nafter, thr):
        for r in range(2):
            for ip in range(4):
                rem = 16 - (8*r + 2*ip + 2) + nafter
                if rem <= thr: e(f"s_waitcnt vmcnt({rem})")
                r0 = W + 16*r + 4*ip; r1 = r0 + 2
                for w in range(2):
                    e(f"v_perm_b32 v{T+16*r+4*(2*w)+ip}, v{r1+w}, v{r0+w}, s8")
                    e(f"v_perm_b32 v{T+16*r+4*(2*w+1)+ip}, v{r1+w}, v{r0+w}, s9")
    AC = 8
    def proj_mfma(T):
        for r in range(2):
            for j in range(4):
                a = AC + 4*j
                src = "0" if r == 0 else f"v[{a}:{a+3}]"
                t = T + 16*r + 4*j
                e(f"v_mfma_f32_16x16x32_bf16 v[{a}:{a+3}], v[{t}:{t+3}], v[{XB+4*r}:{XB+4*r+3}], {src}")
        e("s_nop 4")
        for j in range(4):
            a = AC + 4*j
            e(f"ds_write_b128 v149, v[{a}:{a+3}] offset:{L_RED + 1280*j}")
    def reduce():
        for w in range(4):
            for jp in range(2):
                e(f"ds_read2st64_b32 v[{24+4*w+2*jp}:{25+4*w+2*jp}], v150 offset0:{5*(4*w+2*jp)} offset1:{5*(4*w+2*jp+1)}")
        e("s_waitcnt lgkmcnt(4)")
        e("v_pk_add_f32 v[24:25], v[24:25], v[28:29]")
        e("v_pk_add_f32 v[26:27], v[26:27], v[30:31]")
        e("s_waitcnt lgkmcnt(0)")
        e("v_pk_add_f32 v[32:33], v[32:33], v[36:37]")
        e("v_pk_add_f32 v[34:35], v[34:35], v[38:39]")
        e("v_pk_add_f32 v[24:25], v[24:25], v[32:33]")
        e("v_pk_add_f32 v[26:27], v[26:27], v[34:35]")
    def gather4(r):
        e("s_nop 1")
        dpp("v_mov_b32", r+1, r, None, "quad_perm:[1,1,1,1]")
        dpp("v_mov_b32", r+2, r, None, "quad_perm:[2,2,2,2]")
        dpp("v_mov_b32", r+3, r, None, "quad_perm:[3,3,3,3]")
    def gather2(r):
        e("s_nop 1")
        dpp("v_mov_b32", r+2, r, None, "quad_perm:[1,1,3,3]")
        dpp("v_mov_b32", r+3, r+1, None, "quad_perm:[1,1,3,3]")

    transpose(WQ, TQ, 1, cfg.h_thr)
    e("s_nop 0")
    stamp(1)
    proj_mfma(TQ)
    e(f"s_mov_b32 s15, {cfg.spin_max}")
    e("s_waitcnt vmcnt(0)")
    e("L_gc:")
    e("v_cmp_gt_u32 vcc, 8, v154")
    e("s_cbranch_vccz L_gc_done")
    e("s_sub_u32 s15, s15, 1")
    e("s_cbranch_scc1 L_gc_done")
    e("s_sleep 16")
    e("buffer_load_dword v154, v156, s[48:51], 0 offen sc1")
    e("s_waitcnt vmcnt(0)")
    e("s_branch L_gc")
    e("L_gc_done:")
    stamp(4)
    e("s_waitcnt lgkmcnt(0)")
    e("s_mov_b64 exec, 1")
    e(f"ds_add_u32 v152, v153 offset:{L_FLAG}")
    e("s_mov_b64 exec, -1")
    e("L_hs1:")
    e(f"ds_read_b32 v154, v152 offset:{L_FLAG}")
    e("s_waitcnt lgkmcnt(0)")
    e("v_readfirstlane_b32 s11, v154")
    e("s_sub_u32 s15, s15, 1")
    e("s_cbranch_scc1 L_hs1_done")
    e("s_cmp_lt_u32 s11, 4")
    e("s_cbranch_scc1 L_hs1")
    e("L_hs1_done:")
    reduce()
    e("v_cvt_pk_bf16_f32 v164, v24, v25")
    e("v_cvt_pk_bf16_f32 v165, v26, v27")
    e("v_min_u32 v164, -2, v164")
    e("v_min_u32 v165, -2, v165")
    gather2(164)
    e("s_mov_b64 exec, s[56:57]")
    e("buffer_store_dwordx4 v[164:167], v162, s[44:47], s63 offen sc1")
    e("s_mov_b64 exec, -1")
    stamp(2)
    def woload(n):
        r, i = n >> 3, n & 7
        d = WO + 16*r + 2*i
        rows = (i >> 2)*128 + (i & 3)*8
        e(f"s_add_u32 s11, s13, {rows*1024}")
        e(f"buffer_load_dwordx2 v[{d}:{d+1}], v4, s[40:43], s11 offen offset:{r*2048} nt")
        if n >= cfg.ho_thr and n < 15: e(f"s_waitcnt vmcnt({cfg.ho_thr})")
    for n in range(cfg.qpoll_at): woload(n)
    e("s_cmp_lg_u32 s3, 0")
    e("s_cbranch_scc1 L_noq")
    e("v_bfe_u32 v157, v0, 2, 2")
    e("v_lshl_add_u32 v157, v1, 2, v157")
    e("v_lshlrev_b32 v157, 4, v157")
    e("v_lshl_add_u32 v157, v151, 8, v157")
    e("L_qp:")
    e("buffer_load_dwordx4 v[8:11], v157, s[44:47], s62 offen sc1")
    e("buffer_load_dwordx4 v[12:15], v157, s[44:47], s62 offen offset:1024 sc1")
    e("s_waitcnt vmcnt(0)")
    e("v_max3_u32 v16, v8, v9, v10")
    e("v_max3_u32 v17, v11, v12, v13")
    e("v_max3_u32 v16, v16, v14, v15")
    e("v_max_u32 v16, v16, v17")
    e("v_cmp_eq_u32 vcc, -1, v16")
    e("s_sub_u32 s15, s15, 1")
    e("s_cbranch_scc1 L_qp_done")
    e("s_cbranch_vccnz L_qp")
    e("L_qp_done:")
    for k in range(4):
        e(f"v_lshlrev_b32 v16, 16, v{8+k}"); e(f"v_lshlrev_b32 v17, 16, v{12+k}")
        e(f"v_and_b32 v18, 0xffff0000, v{8+k}"); e(f"v_and_b32 v19, 0xffff0000, v{12+k}")
        e("v_add_f32 v16, v16, v17"); e("v_add_f32 v18, v18, v19")
        e(f"v_cvt_pk_bf16_f32 v{20+k}, v16, v18")
    e(f"ds_write_b128 v155, v[20:23] offset:{L_Q}")
    e("s_waitcnt lgkmcnt(0)")
    e(f"ds_write_b32 v152, v153 offset:{L_FLAG+4}")
    stamp(5)
    e("L_noq:")
    for n in range(cfg.qpoll_at, 16): woload(n)
    transpose(WO, TO, 0, cfg.ho_thr)
    stamp(3)
    e("s_lshl_b32 s11, s3, 9")
    e("v_lshl_add_u32 v6, v0, 3, s11")
    e("v_bfe_u32 v7, v0, 1, 2")
    e("v_lshlrev_b32 v7, 6, v7")
    e("s_lshl_b32 s12, s6, 3"); e("s_add_u32 s12, s12, s4"); e("s_lshl_b32 s12, s12, 10")
    e("s_lshl_b32 s11, s7, 7"); e("s_add_u32 s12, s12, s11")
    e("v_lshrrev_b32 v157, 5, v0")
    e("v_lshlrev_b32 v156, 3, v3")
    e("v_lshl_add_u32 v156, v157, 2, v156")
    e(f"s_mov_b32 s15, {cfg.spin_max}")
    e("s_waitcnt lgkmcnt(0)")
    stamp(6)
    e("s_barrier")
    stamp(7)
    for k in range(4):
        e(f"ds_read_b128 v[{8+4*k}:{11+4*k}], v7 offset:{L_ML+16*k}")
    for w in range(8):
        e(f"ds_read_b64 v[{24+2*w}:{25+2*w}], v6 offset:{L_PART+2048*w}")
    e("s_waitcnt lgkmcnt(8)")
    e("v_max3_f32 v40, v8, v10, v12")
    e("v_max3_f32 v41, v14, v16, v18")
    e("v_max3_f32 v40, v40, v20, v22")
    e("v_max_f32 v40, v40, v41")
    for w in range(8):
        e(f"v_sub_f32 v{8+2*w}, v{8+2*w}, v40")
    for w in range(8):
        e(f"v_exp_f32 v{8+2*w}, v{8+2*w}")
    e("v_mul_f32 v41, v8, v9")
    e("v_mul_f32 v42, v10, v11")
    for w in range(2, 8):
        e(f"v_fmac_f32 v{41+(w&1)}, v{8+2*w}, v{9+2*w}")
    e("v_add_f32 v41, v41, v42")
    e("v_rcp_f32 v41, v41")
    e("s_waitcnt lgkmcnt(0)")
    e("v_mul_f32 v44, v24, v8"); e("v_mul_f32 v45, v25, v8")
    e("v_mul_f32 v46, v26, v10"); e("v_mul_f32 v47, v27, v10")
    for w in range(2, 8):
        d = 44 + 2*(w & 1)
        e(f"v_fmac_f32 v{d}, v{24+2*w}, v{8+2*w}"); e(f"v_fmac_f32 v{d+1}, v{25+2*w}, v{8+2*w}")
    e("v_add_f32 v44, v44, v46"); e("v_add_f32 v45, v45, v47")
    e("v_mul_f32 v44, v44, v41"); e("v_mul_f32 v45, v45, v41")
    e("v_cvt_pk_bf16_f32 v44, v44, v45")
    e("v_min_u32 v44, -2, v44")
    gather4(44)
    e("s_mov_b64 exec, s[58:59]")
    e("buffer_store_dwordx4 v[44:47], v160, s[44:47], s96 offen sc1")
    e("s_mov_b64 exec, -1")
    stamp(8)
    e("L_op:")
    e(f"buffer_load_dwordx4 v[{XB}:{XB+3}], v5, s[44:47], s10 offen sc1")
    e(f"buffer_load_dwordx4 v[{XB+4}:{XB+7}], v5, s[44:47], s10 offen offset:64 sc1")
    e("s_waitcnt vmcnt(0)")
    e(f"v_max3_u32 v40, v{XB}, v{XB+1}, v{XB+2}")
    e(f"v_max3_u32 v41, v{XB+3}, v{XB+4}, v{XB+5}")
    e(f"v_max3_u32 v40, v40, v{XB+6}, v{XB+7}")
    e("v_max_u32 v40, v40, v41")
    e("v_cmp_eq_u32 vcc, -1, v40")
    e("s_sub_u32 s15, s15, 1")
    e("s_cbranch_scc1 L_op_done")
    e("s_cbranch_vccnz L_op")
    e("L_op_done:")
    stamp(9)
    proj_mfma(TO)
    e("s_waitcnt lgkmcnt(0)")
    e("s_barrier")
    reduce()
    for k in range(4): e(f"v_min_u32 v{24+k}, -2, v{24+k}")
    e("buffer_store_dwordx4 v[24:27], v161, s[44:47], s14 offen sc1")
    stamp(10)
    e("s_cmp_lg_u32 s3, 0")
    e("s_cbranch_scc1 L_hend")
    e(f"s_mov_b32 s15, {cfg.spin_max}")
    e("L_fp:")
    for k in range(4):
        e(f"buffer_load_dwordx4 v[{8+4*k}:{11+4*k}], v155, s[44:47], s60 offen offset:{1024*k} sc1")
    e("s_waitcnt vmcnt(0)")
    e("v_max3_u32 v40, v8, v9, v10")
    e("v_max3_u32 v41, v11, v12, v13")
    e("v_max3_u32 v42, v14, v15, v16")
    e("v_max3_u32 v43, v17, v18, v19")
    e("v_max3_u32 v40, v40, v20, v21")
    e("v_max3_u32 v41, v41, v22, v23")
    e("v_max3_u32 v40, v40, v42, v43")
    e("v_max_u32 v40, v40, v41")
    e("v_cmp_eq_u32 vcc, -1, v40")
    e("s_sub_u32 s15, s15, 1")
    e("s_cbranch_scc1 L_fp_done")
    e("s_cbranch_vccnz L_fp")
    e("L_fp_done:")
    stamp(11)
    e("v_pk_add_f32 v[8:9], v[8:9], v[12:13]")
    e("v_pk_add_f32 v[10:11], v[10:11], v[14:15]")
    e("v_pk_add_f32 v[16:17], v[16:17], v[20:21]")
    e("v_pk_add_f32 v[18:19], v[18:19], v[22:23]")
    e("v_pk_add_f32 v[8:9], v[8:9], v[16:17]")
    e("v_pk_add_f32 v[10:11], v[10:11], v[18:19]")
    e("s_nop 1")
    e("v_permlane32_swap_b32 v8, v10")
    e("v_permlane32_swap_b32 v9, v11")
    e("v_add_f32 v8, v8, v10")
    e("v_add_f32 v9, v9, v11")
    e("v_mov_b32 v10, v8"); e("v_mov_b32 v11, v9")
    e("s_nop 1")
    e("v_permlane16_swap_b32 v8, v10")
    e("v_permlane16_swap_b32 v9, v11")
    e("v_add_f32 v8, v8, v10")
    e("v_add_f32 v9, v9, v11")
    e("v_cvt_pk_bf16_f32 v8, v8, v9")
    e("s_mov_b32 exec_lo, 0x0000ffff"); e("s_mov_b32 exec_hi, 0x0000ffff")
    e("buffer_store_dword v8, v156, s[52:55], s12 offen")
    if cfg.stamps or lk:
        e("s_waitcnt vmcnt(0)")
    stamp(12)
    if lk:
        e("s_memrealtime s[98:99]")
        e("s_waitcnt lgkmcnt(0)")
        e(f"s_sub_u32 s11, s{64+2*lk[1]}, s{64+2*lk[0]}")
        if len(lk) > 3:
            e(f"s_min_u32 s11, s11, {lk[3]}")
            e(f"s_sub_u32 s11, {lk[3]}, s11")
        e(f"s_mul_i32 s11, s11, {lk[2]}")
        e("s_min_u32 s11, s11, 20000")
        e("L_leak:")
        e("s_memrealtime s[100:101]")
        e("s_waitcnt lgkmcnt(0)")
        e("s_sub_u32 s12, s100, s98")
        e("s_cmp_lt_u32 s12, s11")
        e("s_cbranch_scc1 L_leak")
    e("L_hend:")
    write_stamps()
    e("L_end:")
    e("s_endpgm")

    body = "\n".join(x if x.endswith(":") else "    " + x for x in L)
    return (HDR + f"; @launch grid=(256,1,1) block=(768,1,1) lds={LDS_BYTES}\n"
        + f""".amdgcn_target "amdgcn-amd-amdhsa--gfx950"
.text
.globl {KN}_kernel
.p2align 8
.type {KN}_kernel,@function
{KN}_kernel:
""" + body + f"""
.section .rodata,"a"
.p2align 6
.amdhsa_kernel {KN}_kernel
  .amdhsa_next_free_vgpr 168
  .amdhsa_next_free_sgpr 102
  .amdhsa_accum_offset 168
  .amdhsa_group_segment_fixed_size 0
  .amdhsa_kernarg_size 64
  .amdhsa_user_sgpr_count 2
  .amdhsa_user_sgpr_kernarg_segment_ptr 1
  .amdhsa_system_sgpr_workgroup_id_x 1
.end_amdhsa_kernel
""")

if __name__ == "__main__":
    cfg = Cfg()
    out = sys.argv[1]
    for kv in sys.argv[2:]:
        k, v = kv.split("=")
        assert hasattr(cfg, k), k
        if v == "None": v = None
        elif v in ("True", "False"): v = (v == "True")
        else:
            try: v = int(v, 0)
            except ValueError: v = v.replace("+", " ")
        setattr(cfg, k, v)
    txt = gen(cfg)
    import os
    sys.path.insert(0, os.path.dirname(__file__))
    import hazcheck
    assert hazcheck.check(txt) == 0
    open(out, "w").write(txt)
```

```python
import sys, math
KN = "standalone__sliding_block_cached__sampling"

HDR = """; Kernarg layout for this problem (64 bytes, ptrs only, base s[0:1]):
;   offset   0: d_in[0] x  shape=(32, 1, 512) dtype=bfloat16 strides=(1024, 1024, 2) contiguous=True
;   offset   8: d_in[1] k_cache  shape=(32, 8, 2048, 128) dtype=bfloat16 strides=(4194304, 524288, 256, 2) contiguous=True
;   offset  16: d_in[2] v_cache  shape=(32, 8, 2048, 128) dtype=bfloat16 strides=(4194304, 524288, 256, 2) contiguous=True
;   offset  24: d_in[3] wq  shape=(512, 4096) dtype=bfloat16 strides=(8192, 2) contiguous=True
;   offset  32: d_in[4] wo  shape=(4096, 512) dtype=bfloat16 strides=(1024, 2) contiguous=True
;   offset  56: d_ws      536870912 bytes workspace
"""

class Cfg:
    stamps = False
    nk_thr = 2
    nv_thr = 2
    nv_pre = 8
    nv_extra = 3
    h_thr = 5
    ho_thr = 3
    qpoll_at = 8
    spin_max = 0x40000
    hprio = 3
    xnt = ""
    alt = False
    boost = 0
    leak = None
    lsel = None

WS_USED = 0x200000
STAMP_WS = 0x10000000
L_FLAG = 0
L_ML = 256
L_Q = 512
L_PART = 1536
L_RED = L_PART + 16384
LDS_BYTES = L_RED + 16 * 1280
S_Q, S_O, S_P = 0, 2048, 4096
NST = 16

def gen(cfg):
    L = []
    e = L.append
    lk = [int(x) for x in cfg.leak.split(",")] if cfg.leak else None
    def stamp(i):
        if cfg.stamps or (lk and i in lk[:2]):
            e(f"s_memrealtime s[{64+2*i}:{65+2*i}]")
    def srd_c(d, size):
        e(f"s_mov_b32 s{d+2}, {size:#x}"); e(f"s_mov_b32 s{d+3}, 0x20000")
    def srd_p(d, lo):
        e(f"s_mov_b64 s[{d}:{d+1}], s[{lo}:{lo+1}]")
    def write_stamps():
        if not cfg.stamps: return
        e("s_waitcnt lgkmcnt(0) vmcnt(0)")
        srd_p(56, 30); srd_c(56, 0x20000000)
        e("s_mul_i32 s60, s2, 12"); e("s_add_u32 s60, s60, s3"); e(f"s_mul_i32 s60, s60, {NST*8}")
        e(f"s_add_u32 s60, s60, {STAMP_WS:#x}")
        e("s_mov_b64 exec, 1")
        e("v_mov_b32 v2, 0")
        for j in range(NST):
            e(f"v_mov_b32 v4, s{64+2*j}"); e(f"v_mov_b32 v5, s{65+2*j}")
            e(f"buffer_store_dwordx2 v[4:5], v2, s[56:59], s60 offen offset:{8*j}")
            e("s_waitcnt vmcnt(0)")
    def dpp(op, d, s0, s1, ctl, bank=0xf):
        if s1 is None: e(f"{op}_dpp v{d}, v{s0} {ctl} row_mask:0xf bank_mask:{bank:#x}")
        else: e(f"{op}_dpp v{d}, v{s0}, v{s1} {ctl} row_mask:0xf bank_mask:{bank:#x}")

    KB, VB, QB, DT, RB, CB, ACC = 8, 72, 136, 140, 144, 148, 152
    stamp(0)
    e("s_load_dwordx16 s[16:31], s[0:1], 0")
    e("v_lshrrev_b32 v1, 6, v0")
    e("s_cmp_ge_u32 s2, 256")
    e("s_cbranch_scc1 L_end")
    e("v_readfirstlane_b32 s3, v1")
    e("v_and_b32 v0, 63, v0")
    e("s_and_b32 s4, s2, 7")
    e("s_lshr_b32 s5, s2, 3")
    e("s_lshl_b32 s62, s2, 13")
    srd_c(44, WS_USED)
    e("s_cmp_ge_u32 s3, 4")
    e("s_cbranch_scc1 L_attn")

    WQ, WO, TQ, TO, XB = 8, 40, 72, 104, 136
    if cfg.hprio: e(f"s_setprio {cfg.hprio}")
    e("s_lshr_b32 s6, s5, 3")
    e("s_and_b32 s7, s5, 7")
    e("s_and_b32 s59, s6, 1")
    e("s_lshr_b32 s58, s6, 1")
    e("v_lshrrev_b32 v1, 4, v0")
    e("v_and_b32 v3, 15, v0")
    e("v_lshlrev_b32 v7, 4, v1")
    e("v_lshl_add_u32 v5, v3, 10, v7")
    e("v_lshlrev_b32 v6, 16, v1")
    e("v_lshl_add_u32 v6, v3, 3, v6")
    e("v_and_b32 v4, 1, v1"); e("v_lshlrev_b32 v4, 8, v4")
    e("v_lshrrev_b32 v2, 1, v1"); e("v_add_u32 v4, v4, v2")
    e("v_lshlrev_b32 v4, 10, v4"); e("v_lshl_add_u32 v4, v3, 3, v4")
    e("s_lshl_b32 s63, s58, 14"); e("s_lshl_b32 s11, s59, 9"); e("s_add_u32 s63, s63, s11")
    e("s_lshl_b32 s10, s3, 7"); e("s_add_u32 s63, s63, s10"); e("s_add_u32 s10, s10, s11")
    e("s_lshl_b32 s12, s10, 12")
    e("s_lshl_b32 s11, s4, 10"); e("s_add_u32 s12, s12, s11")
    e("s_lshl_b32 s14, s7, 7"); e("s_add_u32 s12, s12, s14")
    e("s_lshl_b32 s13, s4, 19"); e("s_add_u32 s13, s13, s14")
    e("s_lshl_b32 s11, s3, 15"); e("s_add_u32 s13, s13, s11")
    e("s_lshl_b32 s11, s59, 12"); e("s_add_u32 s13, s13, s11")
    srd_c(32, 0x8000); srd_c(36, 0x400000); srd_c(40, 0x400000); srd_c(48, 256)
    for r in range(144, 148): e(f"v_mov_b32 v{r}, -1")
    e("v_lshlrev_b32 v155, 4, v0")
    e("v_and_b32 v156, 31, v0"); e("v_lshlrev_b32 v156, 3, v156")
    e("s_and_b32 s15, s2, 31"); e("s_lshl_b32 s15, s15, 3")
    e("s_mov_b32 s61, 1")
    e(f"s_add_u32 s60, s62, {S_P}")
    e("s_barrier")
    e("s_cmp_lg_u32 s3, 0")
    e("s_waitcnt lgkmcnt(0)")
    srd_p(36, 22); srd_p(44, 30); srd_p(32, 16); srd_p(40, 24); srd_p(48, 28)
    e("s_cbranch_scc1 L_noclear")
    for k in range(3):
        e(f"buffer_store_dwordx4 v[144:147], v155, s[44:47], s62 offen offset:{1024*k} sc1")
    for k in range(4):
        e(f"buffer_store_dwordx4 v[144:147], v155, s[44:47], s60 offen offset:{1024*k} sc1")
    e("L_noclear:")
    seq = [("x", 0, 0), ("x", 1, 0)] + [("wq", r, i) for r in range(2) for i in range(8)] + [("chk", 0, 0)]
    pos = {}
    for n, (k, r, i) in enumerate(seq):
        pos[(k, r, i)] = n
        if k == "wq":
            d = WQ + 16*r + 2*i
            if r or i: e(f"s_add_u32 s11, s12, {(r*32+i)*8192}")
            e(f"buffer_load_dwordx2 v[{d}:{d+1}], v6, s[36:39], {'s11' if (r or i) else 's12'} offen nt")
        elif k == "wo":
            d = WO + 16*r + 2*i
            rows = (i >> 2)*128 + (i & 3)*8
            e(f"s_add_u32 s11, s13, {rows*1024}")
            e(f"buffer_load_dwordx2 v[{d}:{d+1}], v4, s[40:43], s11 offen offset:{r*2048} nt")
        elif k == "x":
            e(f"buffer_load_dwordx4 v[{XB+4*r}:{XB+4*r+3}], v5, s[32:35], s63 offen offset:{64*r} {cfg.xnt}")
        else:
            e("buffer_load_dword v154, v156, s[48:51], 0 offen sc1")
        if n >= cfg.h_thr and n < len(seq) - 1: e(f"s_waitcnt vmcnt({cfg.h_thr})")
        if n == cfg.h_thr:
            e("s_cmp_lg_u32 s3, 0")
            e("s_cbranch_scc1 L_noarr")
            e("s_atomic_add s61, s[28:29], s15 glc")
            e("L_noarr:")
    NSEQ = len(seq)
    e("s_branch L_helper2")

    e("L_attn:")
    e("s_sub_u32 s6, s3, 4")
    e("s_lshl_b32 s10, s2, 19")
    e("s_lshl_b32 s11, s6, 14")
    e("s_add_u32 s10, s10, s11")
    e(f"s_add_u32 s10, s10, {1536*256}")
    e("s_lshl_b32 s11, s5, 12")
    e("s_xor_b32 s10, s10, s11")
    e("v_and_b32 v3, 3, v0")
    e("v_bfe_u32 v4, v0, 2, 2")
    e("v_lshrrev_b32 v5, 4, v0")
    e("v_lshlrev_b32 v5, 6, v5")
    e("v_lshl_add_u32 v1, v4, 8, v5")
    e("v_lshl_add_u32 v1, v3, 4, v1")
    e("v_lshlrev_b32 v2, 4, v0")
    srd_c(32, 0x8000000); srd_c(36, 0x8000000)
    tcount = [0]
    def thr(n):
        if cfg.boost:
            tcount[0] += 1
            e(f"s_waitcnt vmcnt({n + cfg.boost})")
            e(f"s_cbranch_vccnz L_thr{tcount[0]}")
            e(f"s_waitcnt vmcnt({n})")
            e(f"L_thr{tcount[0]}:")
        else:
            e(f"s_waitcnt vmcnt({n})")
    if cfg.boost:
        e("s_and_b32 s11, s5, 7")
        e("s_cmp_eq_u32 s11, 3")
        e("s_cselect_b64 vcc, -1, 0")
    e("s_cmp_lg_u32 s3, 11")
    e("s_cbranch_scc1 L_noinit")
    e("v_mov_b32 v8, 0"); e("v_mov_b32 v9, 0")
    e("ds_write_b64 v8, v[8:9]")
    e("s_waitcnt lgkmcnt(0)")
    e("L_noinit:")
    e("s_barrier")
    e("s_waitcnt lgkmcnt(0)")
    srd_p(32, 18); srd_p(36, 20)
    n = 0
    for i in range(16):
        if i % 4 == 0 and i: e(f"s_xor_b32 s11, s10, {(i//4)*4096}")
        r = KB + 4*i
        e(f"buffer_load_dwordx4 v[{r}:{r+3}], v1, s[32:35], {'s11' if i >= 4 else 's10'} offen offset:{(i%4)*1024} nt")
        n += 1
        if cfg.nk_thr is not None and n > cfg.nk_thr and not (cfg.alt and n % 2): thr(cfg.nk_thr)
        if n % 2 == 0 and n < 16: stamp(5 + n // 2)
    if cfg.stamps:
        for j in (13, 14, 15):
            e(f"s_mov_b64 s[{64+2*j}:{65+2*j}], 0")
    stamp(1)
    e("v_mov_b32 v5, 0")
    e(f"s_mov_b32 s12, {cfg.spin_max}")
    npre = min(16, cfg.nv_pre + cfg.nv_extra)
    def vload(i):
        if i % 4 == 0 or i == npre: e(f"s_xor_b32 s13, s10, {(i//4)*4096}")
        r = VB + 4*i
        e(f"buffer_load_dwordx4 v[{r}:{r+3}], v2, s[36:39], s13 offen offset:{(i%4)*1024} nt")
    for i in range(npre):
        vload(i)
        if cfg.nv_thr is not None and i < cfg.nv_pre: thr(cfg.nv_thr)
    stamp(2)
    e("s_mov_b32 s8, 0x05040100")
    e("s_mov_b32 s9, 0x07060302")
    e("s_mov_b32 s14, 0x3e0293ee")
    e("L_tq:")
    e(f"ds_read_b32 v6, v5 offset:{L_FLAG+4}")
    e("s_waitcnt lgkmcnt(0)")
    e("v_readfirstlane_b32 s11, v6")
    e("s_sub_u32 s12, s12, 1")
    e("s_cbranch_scc1 L_tq_done")
    e("s_cmp_eq_u32 s11, 1")
    e("s_cbranch_scc1 L_tq_done")
    e("s_sleep 1")
    e("s_branch L_tq")
    e("L_tq_done:")
    e(f"ds_read_b128 v[{QB}:{QB+3}], v2 offset:{L_Q}")
    e(f"s_waitcnt vmcnt({npre}) lgkmcnt(0)")
    stamp(3)
    D = lambda l: DT if l == 0 else KB + 4*(l-1)
    def red12(l):
        tb = (l >> 1) & 3; t2 = tb ^ 1
        dpp("v_add_f32", D(l)+tb, D(l)+(tb^2), D(l)+tb, "row_ror:8")
        dpp("v_add_f32", D(l)+t2, D(l)+(t2^2), D(l)+t2, "row_ror:8")
    def red3(l):
        tb = (l >> 1) & 3; t2 = tb ^ 1
        dpp("v_add_f32", RB + (l >> 3)*2 + (l & 1), D(l)+t2, D(l)+tb, f"row_ror:{4*((tb-t2)&3)}", 1 << tb)
    LAG = 4
    for l in range(16 + LAG + 1):
        if l < 16:
            a = KB + 4*l
            e(f"v_mfma_f32_16x16x32_bf16 v[{D(l)}:{D(l)+3}], v[{a}:{a+3}], v[{QB}:{QB+3}], 0")
            if l < LAG: e("s_nop 1")
        if 0 <= l - LAG < 16: red12(l - LAG)
        if 0 <= l - LAG - 1 < 16: red3(l - LAG - 1)
        if l == 16 + LAG - 1: e("s_nop 0")
    e("s_mov_b32 s48, 0x000f000f"); e("s_mov_b32 s49, 0x000f000f")
    e("s_mov_b32 s50, 0x00f000f0"); e("s_mov_b32 s51, 0x00f000f0")
    e(f"v_max3_f32 v5, v{RB}, v{RB+1}, v{RB+2}")
    e(f"v_max_f32 v5, v5, v{RB+3}")
    e("s_mov_b32 s52, 0x0f000f00"); e("s_mov_b32 s53, 0x0f000f00")
    dpp("v_max_f32", 5, 5, 5, "row_ror:8")
    e("s_mov_b32 s54, 0xf000f000"); e("s_mov_b32 s55, 0xf000f000")
    dpp("v_max_f32", 5, 5, 5, "row_ror:4")
    e("v_mov_b32 v6, v5")
    e("s_nop 1")
    e("v_permlane32_swap_b32 v5, v6")
    e("v_max_f32 v5, v5, v6")
    e("v_mov_b32 v6, v5")
    e("s_nop 1")
    e("v_permlane16_swap_b32 v5, v6")
    e("v_max_f32 v5, v5, v6")
    e("v_mul_f32 v6, s14, v5")
    for i in range(4):
        e(f"v_fma_f32 v{RB+i}, v{RB+i}, s14, -v6")
    for i in range(4):
        e(f"v_exp_f32 v{RB+i}, v{RB+i}")
    for i in range(npre, 16):
        vload(i)
    if npre == 16: e("s_nop 0")
    e(f"v_cvt_pk_bf16_f32 v{CB}, v{RB}, v{RB+1}")
    e(f"v_cvt_pk_bf16_f32 v{CB+1}, v{RB+2}, v{RB+3}")
    e(f"v_add_f32 v7, v{RB}, v{RB+1}")
    e(f"v_add_f32 v5, v{RB+2}, v{RB+3}")
    e("v_add_f32 v7, v7, v5")
    PM = KB
    for u in range(2):
        for k in range(4):
            e(f"v_cndmask_b32 v{PM+16*u+4*k+k}, 0, v{CB+u}, s[{48+2*k}:{49+2*k}]")
        dpp("v_add_f32", 7, 7, 7, f"row_ror:{8 >> u}")
    e("v_mov_b32 v5, v7")
    cnt = 0
    for u in range(2):
        for q4 in range(4):
            for k in range(4):
                if k == q4: continue
                dpp("v_mov_b32", PM+16*u+4*q4+k, PM+16*u+4*k+k, None, f"row_ror:{4*((q4-k)&3)}")
                cnt += 1
                if cnt == 2:
                    e("v_permlane32_swap_b32 v7, v5"); e("v_add_f32 v7, v7, v5"); e("v_mov_b32 v5, v7")
                if cnt == 4:
                    e("v_permlane16_swap_b32 v7, v5"); e("v_add_f32 v7, v7, v5")
                    e("s_lshl_b32 s11, s6, 3")
                    e("v_lshl_add_u32 v3, v3, 6, s11")
                    e(f"ds_write_b64 v3, v[6:7] offset:{L_ML}")
    e("s_lshl_b32 s11, s6, 11")
    e("v_lshl_add_u32 v3, v0, 4, s11")
    stamp(4)
    for u in range(2):
        TB = KB + 32 if u == 0 else VB
        for ip in range(4):
            rem = 16 - (8*u + 2*ip + 2)
            e(f"s_waitcnt vmcnt({rem})")
            r0 = VB + 32*u + 8*ip; r1 = r0 + 4
            for w in range(4):
                e(f"v_perm_b32 v{TB+4*(2*w)+ip}, v{r1+w}, v{r0+w}, s8")
                e(f"v_perm_b32 v{TB+4*(2*w+1)+ip}, v{r1+w}, v{r0+w}, s9")
        for j in (0, 1, 4, 2, 5, 3, 6, 7):
            a = ACC + 4*(j >> 2)
            src = "0" if (u == 0 and (j & 3) == 0) else f"v[{a}:{a+3}]"
            b = PM + 16*u + 4*(j & 3)
            e(f"v_mfma_f32_16x16x32_bf16 v[{a}:{a+3}], v[{TB+4*j}:{TB+4*j+3}], v[{b}:{b+3}], {src}")
    e("s_nop 5")
    e(f"ds_write_b128 v3, v[{ACC}:{ACC+3}] offset:{L_PART}")
    e("s_nop 0")
    e(f"ds_write_b128 v3, v[{ACC+4}:{ACC+7}] offset:{L_PART+1024}")
    e("s_waitcnt lgkmcnt(0)")
    stamp(5)
    e("s_barrier")
    if cfg.stamps:
        e("s_barrier")
    write_stamps()
    e("s_endpgm")

    e("L_helper2:")
    if cfg.stamps:
        for j in range(1, NST):
            e(f"s_mov_b64 s[{64+2*j}:{65+2*j}], 0")
    stamp(13)
    e("s_mov_b32 s8, 0x05040100")
    e("s_mov_b32 s9, 0x07060302")
    srd_p(52, 26); srd_c(52, 0x8000)
    e("s_mov_b32 s56, 0x55555555"); e("s_mov_b32 s57, 0x55555555")
    e("s_lshl_b32 s12, s58, 7"); e("s_add_u32 s12, s12, s4"); e("s_lshl_b32 s12, s12, 13")
    e("s_add_u32 s10, s10, s12"); e(f"s_add_u32 s10, s10, {S_O}")
    e("v_lshl_add_u32 v5, v3, 16, v7")
    e("s_lshl_b32 s63, s3, 18"); e("s_add_u32 s63, s63, s12"); e("s_add_u32 s63, s63, s14")
    e("s_lshl_b32 s11, s59, 10"); e("s_add_u32 s63, s63, s11")
    e("v_lshlrev_b32 v162, 16, v1"); e("v_lshl_add_u32 v162, v3, 3, v162")
    e("s_lshl_b32 s11, s3, 8"); e("s_add_u32 s96, s62, s11"); e(f"s_add_u32 s96, s96, {S_O}")
    e("v_lshlrev_b32 v160, 2, v0")
    e("s_lshl_b32 s14, s58, 7"); e("s_lshr_b32 s11, s3, 1"); e("s_lshl_b32 s11, s11, 6"); e("s_add_u32 s14, s14, s11")
    e("s_lshl_b32 s11, s7, 3"); e("s_add_u32 s14, s14, s11")
    e("s_and_b32 s11, s3, 1"); e("s_lshl_b32 s11, s11, 2"); e("s_add_u32 s14, s14, s11")
    e("s_lshl_b32 s14, s14, 13")
    e("s_lshl_b32 s11, s4, 1"); e("s_add_u32 s11, s11, s59"); e("s_lshl_b32 s11, s11, 8"); e("s_add_u32 s14, s14, s11")
    e(f"s_add_u32 s14, s14, {S_P}")
    e("v_lshlrev_b32 v161, 13, v1"); e("v_lshl_add_u32 v161, v3, 4, v161")
    e("s_mov_b32 s58, 0x11111111"); e("s_mov_b32 s59, 0x11111111")
    e("v_mov_b32 v152, 0"); e("v_mov_b32 v153, 1")
    e("v_mul_u32_u24 v149, 288, v1")
    e("v_lshl_add_u32 v149, v3, 4, v149")
    e("s_mul_i32 s11, s3, 5120")
    e("v_add_u32 v149, s11, v149")
    e("v_bfe_u32 v150, v0, 2, 2")
    e("v_mul_u32_u24 v150, 288, v150")
    e("v_add_u32 v150, v150, v7")
    e("v_and_b32 v151, 3, v0")
    e("v_lshl_add_u32 v150, v151, 2, v150")
    e("s_lshl_b32 s11, s3, 6"); e(f"s_add_u32 s11, s11, {L_RED}")
    e("v_add_u32 v150, s11, v150")

    def transpose(W, T, nafter, thr):
        for r in range(2):
            for ip in range(4):
                rem = 16 - (8*r + 2*ip + 2) + nafter
                if rem <= thr: e(f"s_waitcnt vmcnt({rem})")
                r0 = W + 16*r + 4*ip; r1 = r0 + 2
                for w in range(2):
                    e(f"v_perm_b32 v{T+16*r+4*(2*w)+ip}, v{r1+w}, v{r0+w}, s8")
                    e(f"v_perm_b32 v{T+16*r+4*(2*w+1)+ip}, v{r1+w}, v{r0+w}, s9")
    AC = 8
    def proj_mfma(T):
        for r in range(2):
            for j in range(4):
                a = AC + 4*j
                src = "0" if r == 0 else f"v[{a}:{a+3}]"
                t = T + 16*r + 4*j
                e(f"v_mfma_f32_16x16x32_bf16 v[{a}:{a+3}], v[{t}:{t+3}], v[{XB+4*r}:{XB+4*r+3}], {src}")
        e("s_nop 4")
        for j in range(4):
            a = AC + 4*j
            e(f"ds_write_b128 v149, v[{a}:{a+3}] offset:{L_RED + 1280*j}")
    def reduce():
        for w in range(4):
            for jp in range(2):
                e(f"ds_read2st64_b32 v[{24+4*w+2*jp}:{25+4*w+2*jp}], v150 offset0:{5*(4*w+2*jp)} offset1:{5*(4*w+2*jp+1)}")
        e("s_waitcnt lgkmcnt(4)")
        e("v_pk_add_f32 v[24:25], v[24:25], v[28:29]")
        e("v_pk_add_f32 v[26:27], v[26:27], v[30:31]")
        e("s_waitcnt lgkmcnt(0)")
        e("v_pk_add_f32 v[32:33], v[32:33], v[36:37]")
        e("v_pk_add_f32 v[34:35], v[34:35], v[38:39]")
        e("v_pk_add_f32 v[24:25], v[24:25], v[32:33]")
        e("v_pk_add_f32 v[26:27], v[26:27], v[34:35]")
    def gather4(r):
        e("s_nop 1")
        dpp("v_mov_b32", r+1, r, None, "quad_perm:[1,1,1,1]")
        dpp("v_mov_b32", r+2, r, None, "quad_perm:[2,2,2,2]")
        dpp("v_mov_b32", r+3, r, None, "quad_perm:[3,3,3,3]")
    def gather2(r):
        e("s_nop 1")
        dpp("v_mov_b32", r+2, r, None, "quad_perm:[1,1,3,3]")
        dpp("v_mov_b32", r+3, r+1, None, "quad_perm:[1,1,3,3]")

    transpose(WQ, TQ, 1, cfg.h_thr)
    e("s_nop 0")
    stamp(1)
    proj_mfma(TQ)
    e(f"s_mov_b32 s15, {cfg.spin_max}")
    e("s_waitcnt vmcnt(0)")
    e("L_gc:")
    e("v_cmp_gt_u32 vcc, 8, v154")
    e("s_cbranch_vccz L_gc_done")
    e("s_sub_u32 s15, s15, 1")
    e("s_cbranch_scc1 L_gc_done")
    e("s_sleep 16")
    e("buffer_load_dword v154, v156, s[48:51], 0 offen sc1")
    e("s_waitcnt vmcnt(0)")
    e("s_branch L_gc")
    e("L_gc_done:")
    stamp(4)
    e("s_waitcnt lgkmcnt(0)")
    e("s_mov_b64 exec, 1")
    e(f"ds_add_u32 v152, v153 offset:{L_FLAG}")
    e("s_mov_b64 exec, -1")
    e("L_hs1:")
    e(f"ds_read_b32 v154, v152 offset:{L_FLAG}")
    e("s_waitcnt lgkmcnt(0)")
    e("v_readfirstlane_b32 s11, v154")
    e("s_sub_u32 s15, s15, 1")
    e("s_cbranch_scc1 L_hs1_done")
    e("s_cmp_lt_u32 s11, 4")
    e("s_cbranch_scc1 L_hs1")
    e("L_hs1_done:")
    reduce()
    e("v_cvt_pk_bf16_f32 v164, v24, v25")
    e("v_cvt_pk_bf16_f32 v165, v26, v27")
    e("v_min_u32 v164, -2, v164")
    e("v_min_u32 v165, -2, v165")
    gather2(164)
    e("s_mov_b64 exec, s[56:57]")
    e("buffer_store_dwordx4 v[164:167], v162, s[44:47], s63 offen sc1")
    e("s_mov_b64 exec, -1")
    stamp(2)
    def woload(n):
        r, i = n >> 3, n & 7
        d = WO + 16*r + 2*i
        rows = (i >> 2)*128 + (i & 3)*8
        e(f"s_add_u32 s11, s13, {rows*1024}")
        e(f"buffer_load_dwordx2 v[{d}:{d+1}], v4, s[40:43], s11 offen offset:{r*2048} nt")
        if n >= cfg.ho_thr and n < 15: e(f"s_waitcnt vmcnt({cfg.ho_thr})")
    for n in range(cfg.qpoll_at): woload(n)
    e("s_cmp_lg_u32 s3, 0")
    e("s_cbranch_scc1 L_noq")
    e("v_bfe_u32 v157, v0, 2, 2")
    e("v_lshl_add_u32 v157, v1, 2, v157")
    e("v_lshlrev_b32 v157, 4, v157")
    e("v_lshl_add_u32 v157, v151, 8, v157")
    e("L_qp:")
    e("buffer_load_dwordx4 v[8:11], v157, s[44:47], s62 offen sc1")
    e("buffer_load_dwordx4 v[12:15], v157, s[44:47], s62 offen offset:1024 sc1")
    e("s_waitcnt vmcnt(0)")
    e("v_max3_u32 v16, v8, v9, v10")
    e("v_max3_u32 v17, v11, v12, v13")
    e("v_max3_u32 v16, v16, v14, v15")
    e("v_max_u32 v16, v16, v17")
    e("v_cmp_eq_u32 vcc, -1, v16")
    e("s_sub_u32 s15, s15, 1")
    e("s_cbranch_scc1 L_qp_done")
    e("s_cbranch_vccnz L_qp")
    e("L_qp_done:")
    for k in range(4):
        e(f"v_lshlrev_b32 v16, 16, v{8+k}"); e(f"v_lshlrev_b32 v17, 16, v{12+k}")
        e(f"v_and_b32 v18, 0xffff0000, v{8+k}"); e(f"v_and_b32 v19, 0xffff0000, v{12+k}")
        e("v_add_f32 v16, v16, v17"); e("v_add_f32 v18, v18, v19")
        e(f"v_cvt_pk_bf16_f32 v{20+k}, v16, v18")
    e(f"ds_write_b128 v155, v[20:23] offset:{L_Q}")
    e("s_waitcnt lgkmcnt(0)")
    e(f"ds_write_b32 v152, v153 offset:{L_FLAG+4}")
    stamp(5)
    e("L_noq:")
    for n in range(cfg.qpoll_at, 16): woload(n)
    transpose(WO, TO, 0, cfg.ho_thr)
    stamp(3)
    e("s_lshl_b32 s11, s3, 9")
    e("v_lshl_add_u32 v6, v0, 3, s11")
    e("v_bfe_u32 v7, v0, 1, 2")
    e("v_lshlrev_b32 v7, 6, v7")
    e("s_lshl_b32 s12, s6, 3"); e("s_add_u32 s12, s12, s4"); e("s_lshl_b32 s12, s12, 10")
    e("s_lshl_b32 s11, s7, 7"); e("s_add_u32 s12, s12, s11")
    e("v_lshrrev_b32 v157, 5, v0")
    e("v_lshlrev_b32 v156, 3, v3")
    e("v_lshl_add_u32 v156, v157, 2, v156")
    e(f"s_mov_b32 s15, {cfg.spin_max}")
    e("s_waitcnt lgkmcnt(0)")
    stamp(6)
    e("s_barrier")
    stamp(7)
    for k in range(4):
        e(f"ds_read_b128 v[{8+4*k}:{11+4*k}], v7 offset:{L_ML+16*k}")
    for w in range(8):
        e(f"ds_read_b64 v[{24+2*w}:{25+2*w}], v6 offset:{L_PART+2048*w}")
    e("s_waitcnt lgkmcnt(8)")
    e("v_max3_f32 v40, v8, v10, v12")
    e("v_max3_f32 v41, v14, v16, v18")
    e("v_max3_f32 v40, v40, v20, v22")
    e("v_max_f32 v40, v40, v41")
    for w in range(8):
        e(f"v_sub_f32 v{8+2*w}, v{8+2*w}, v40")
    for w in range(8):
        e(f"v_exp_f32 v{8+2*w}, v{8+2*w}")
    e("v_mul_f32 v41, v8, v9")
    e("v_mul_f32 v42, v10, v11")
    for w in range(2, 8):
        e(f"v_fmac_f32 v{41+(w&1)}, v{8+2*w}, v{9+2*w}")
    e("v_add_f32 v41, v41, v42")
    e("v_rcp_f32 v41, v41")
    e("s_waitcnt lgkmcnt(0)")
    e("v_mul_f32 v44, v24, v8"); e("v_mul_f32 v45, v25, v8")
    e("v_mul_f32 v46, v26, v10"); e("v_mul_f32 v47, v27, v10")
    for w in range(2, 8):
        d = 44 + 2*(w & 1)
        e(f"v_fmac_f32 v{d}, v{24+2*w}, v{8+2*w}"); e(f"v_fmac_f32 v{d+1}, v{25+2*w}, v{8+2*w}")
    e("v_add_f32 v44, v44, v46"); e("v_add_f32 v45, v45, v47")
    e("v_mul_f32 v44, v44, v41"); e("v_mul_f32 v45, v45, v41")
    e("v_cvt_pk_bf16_f32 v44, v44, v45")
    e("v_min_u32 v44, -2, v44")
    gather4(44)
    e("s_mov_b64 exec, s[58:59]")
    e("buffer_store_dwordx4 v[44:47], v160, s[44:47], s96 offen sc1")
    e("s_mov_b64 exec, -1")
    stamp(8)
    e("L_op:")
    e(f"buffer_load_dwordx4 v[{XB}:{XB+3}], v5, s[44:47], s10 offen sc1")
    e(f"buffer_load_dwordx4 v[{XB+4}:{XB+7}], v5, s[44:47], s10 offen offset:64 sc1")
    e("s_waitcnt vmcnt(0)")
    e(f"v_max3_u32 v40, v{XB}, v{XB+1}, v{XB+2}")
    e(f"v_max3_u32 v41, v{XB+3}, v{XB+4}, v{XB+5}")
    e(f"v_max3_u32 v40, v40, v{XB+6}, v{XB+7}")
    e("v_max_u32 v40, v40, v41")
    e("v_cmp_eq_u32 vcc, -1, v40")
    e("s_sub_u32 s15, s15, 1")
    e("s_cbranch_scc1 L_op_done")
    e("s_cbranch_vccnz L_op")
    e("L_op_done:")
    stamp(9)
    proj_mfma(TO)
    e("s_waitcnt lgkmcnt(0)")
    e("s_barrier")
    reduce()
    for k in range(4): e(f"v_min_u32 v{24+k}, -2, v{24+k}")
    e("buffer_store_dwordx4 v[24:27], v161, s[44:47], s14 offen sc1")
    stamp(10)
    e("s_cmp_lg_u32 s3, 0")
    e("s_cbranch_scc1 L_hend")
    e(f"s_mov_b32 s15, {cfg.spin_max}")
    e("L_fp:")
    for k in range(4):
        e(f"buffer_load_dwordx4 v[{8+4*k}:{11+4*k}], v155, s[44:47], s60 offen offset:{1024*k} sc1")
    e("s_waitcnt vmcnt(0)")
    e("v_max3_u32 v40, v8, v9, v10")
    e("v_max3_u32 v41, v11, v12, v13")
    e("v_max3_u32 v42, v14, v15, v16")
    e("v_max3_u32 v43, v17, v18, v19")
    e("v_max3_u32 v40, v40, v20, v21")
    e("v_max3_u32 v41, v41, v22, v23")
    e("v_max3_u32 v40, v40, v42, v43")
    e("v_max_u32 v40, v40, v41")
    e("v_cmp_eq_u32 vcc, -1, v40")
    e("s_sub_u32 s15, s15, 1")
    e("s_cbranch_scc1 L_fp_done")
    e("s_cbranch_vccnz L_fp")
    e("L_fp_done:")
    stamp(11)
    e("v_pk_add_f32 v[8:9], v[8:9], v[12:13]")
    e("v_pk_add_f32 v[10:11], v[10:11], v[14:15]")
    e("v_pk_add_f32 v[16:17], v[16:17], v[20:21]")
    e("v_pk_add_f32 v[18:19], v[18:19], v[22:23]")
    e("v_pk_add_f32 v[8:9], v[8:9], v[16:17]")
    e("v_pk_add_f32 v[10:11], v[10:11], v[18:19]")
    e("s_nop 1")
    e("v_permlane32_swap_b32 v8, v10")
    e("v_permlane32_swap_b32 v9, v11")
    e("v_add_f32 v8, v8, v10")
    e("v_add_f32 v9, v9, v11")
    e("v_mov_b32 v10, v8"); e("v_mov_b32 v11, v9")
    e("s_nop 1")
    e("v_permlane16_swap_b32 v8, v10")
    e("v_permlane16_swap_b32 v9, v11")
    e("v_add_f32 v8, v8, v10")
    e("v_add_f32 v9, v9, v11")
    e("v_cvt_pk_bf16_f32 v8, v8, v9")
    e("s_mov_b32 exec_lo, 0x0000ffff"); e("s_mov_b32 exec_hi, 0x0000ffff")
    e("buffer_store_dword v8, v156, s[52:55], s12 offen")
    if cfg.stamps or lk:
        e("s_waitcnt vmcnt(0)")
    stamp(12)
    if lk:
        if cfg.lsel:
            reg, val = cfg.lsel.split(",")
            e(f"s_cmp_lg_u32 {reg}, {val}")
            e("s_cbranch_scc1 L_hend")
        e("s_memrealtime s[98:99]")
        e("s_waitcnt lgkmcnt(0)")
        e(f"s_sub_u32 s11, s{64+2*lk[1]}, s{64+2*lk[0]}")
        if len(lk) > 3:
            e(f"s_min_u32 s11, s11, {lk[3]}")
            e(f"s_sub_u32 s11, {lk[3]}, s11")
        e(f"s_mul_i32 s11, s11, {lk[2]}")
        e("s_min_u32 s11, s11, 20000")
        e("L_leak:")
        e("s_memrealtime s[100:101]")
        e("s_waitcnt lgkmcnt(0)")
        e("s_sub_u32 s12, s100, s98")
        e("s_cmp_lt_u32 s12, s11")
        e("s_cbranch_scc1 L_leak")
    e("L_hend:")
    write_stamps()
    e("L_end:")
    e("s_endpgm")

    body = "\n".join(x if x.endswith(":") else "    " + x for x in L)
    return (HDR + f"; @launch grid=(256,1,1) block=(768,1,1) lds={LDS_BYTES}\n"
        + f""".amdgcn_target "amdgcn-amd-amdhsa--gfx950"
.text
.globl {KN}_kernel
.p2align 8
.type {KN}_kernel,@function
{KN}_kernel:
""" + body + f"""
.section .rodata,"a"
.p2align 6
.amdhsa_kernel {KN}_kernel
  .amdhsa_next_free_vgpr 168
  .amdhsa_next_free_sgpr 102
  .amdhsa_accum_offset 168
  .amdhsa_group_segment_fixed_size 0
  .amdhsa_kernarg_size 64
  .amdhsa_user_sgpr_count 2
  .amdhsa_user_sgpr_kernarg_segment_ptr 1
  .amdhsa_system_sgpr_workgroup_id_x 1
.end_amdhsa_kernel
""")

if __name__ == "__main__":
    cfg = Cfg()
    out = sys.argv[1]
    for kv in sys.argv[2:]:
        k, v = kv.split("=")
        assert hasattr(cfg, k), k
        if v == "None": v = None
        elif v in ("True", "False"): v = (v == "True")
        else:
            try: v = int(v, 0)
            except ValueError: v = v.replace("+", " ")
        setattr(cfg, k, v)
    txt = gen(cfg)
    import os
    sys.path.insert(0, os.path.dirname(__file__))
    import hazcheck
    assert hazcheck.check(txt) == 0
    open(out, "w").write(txt)
```

```python
import sys, os
KN = "standalone__sliding_block_cached__sampling"

HDR = """; Kernarg layout for this problem (64 bytes, ptrs only, base s[0:1]):
;   offset   0: d_in[0] x  shape=(32, 1, 512) dtype=bfloat16 strides=(1024, 1024, 2) contiguous=True
;   offset   8: d_in[1] k_cache  shape=(32, 8, 2048, 128) dtype=bfloat16 strides=(4194304, 524288, 256, 2) contiguous=True
;   offset  16: d_in[2] v_cache  shape=(32, 8, 2048, 128) dtype=bfloat16 strides=(4194304, 524288, 256, 2) contiguous=True
;   offset  24: d_in[3] wq  shape=(512, 4096) dtype=bfloat16 strides=(8192, 2) contiguous=True
;   offset  32: d_in[4] wo  shape=(4096, 512) dtype=bfloat16 strides=(1024, 2) contiguous=True
"""

class Cfg:
    stamps = False
    nk_thr = 2
    nv_thr = 2
    nv_pre = 8
    nv_extra = 3
    h_thr = 5
    wo_at = 8
    nearly = 0
    ho_thr = 3
    chk_at = 17
    spec = True
    spin_max = 0x40000
    xnt = ""
    boost = 0
    nb3 = 8
    nbodd = 0
    local = True
    leak = None
    lsel = None

WS_USED = 0x200000
STAMP_WS = 0x10000000
L_FLAG = 0
L_ML = 256
L_Q = 512
L_PART = 1536
L_RED = L_PART + 16384
LDS_BYTES = L_RED + 16 * 1280
S_Q, S_O, S_P = 0, 2048, 4096
NST = 16

def gen(cfg):
    L = []
    e = L.append
    lk = [int(x) for x in cfg.leak.split(",")] if cfg.leak else None
    def stamp(i):
        if cfg.stamps or (lk and i in lk[:2]):
            e(f"s_memrealtime s[{64+2*i}:{65+2*i}]")
    def srd_c(d, size):
        e(f"s_mov_b32 s{d+2}, {size:#x}"); e(f"s_mov_b32 s{d+3}, 0x20000")
    def srd_p(d, lo):
        e(f"s_mov_b64 s[{d}:{d+1}], s[{lo}:{lo+1}]")
    def write_stamps():
        if not cfg.stamps: return
        e("s_waitcnt lgkmcnt(0) vmcnt(0)")
        e("s_sleep 64")
        srd_p(56, 30); srd_c(56, 0x20000000)
        e("s_mul_i32 s60, s2, 12"); e("s_add_u32 s60, s60, s3"); e(f"s_mul_i32 s60, s60, {NST*8}")
        e(f"s_add_u32 s60, s60, {STAMP_WS:#x}")
        e("s_mov_b64 exec, 1")
        e("v_mov_b32 v2, 0")
        for j in range(NST):
            e(f"v_mov_b32 v4, s{64+2*j}"); e(f"v_mov_b32 v5, s{65+2*j}")
            e(f"buffer_store_dwordx2 v[4:5], v2, s[56:59], s60 offen offset:{8*j}")
            e("s_waitcnt vmcnt(0)")
    def dpp(op, d, s0, s1, ctl, bank=0xf):
        if s1 is None: e(f"{op}_dpp v{d}, v{s0} {ctl} row_mask:0xf bank_mask:{bank:#x}")
        else: e(f"{op}_dpp v{d}, v{s0}, v{s1} {ctl} row_mask:0xf bank_mask:{bank:#x}")
    def lds_spin(name, off, cmp, val, vaddr, vtmp, cnt, sleep=1):
        e(f"L_{name}:")
        e(f"ds_read_b32 v{vtmp}, v{vaddr} offset:{off}")
        e("s_waitcnt lgkmcnt(0)")
        e(f"v_readfirstlane_b32 s11, v{vtmp}")
        e(f"s_sub_u32 s{cnt}, s{cnt}, 1")
        e(f"s_cbranch_scc1 L_{name}_done")
        e(f"s_cmp_{cmp}_u32 s11, {val}")
        if sleep:
            e(f"s_cbranch_scc1 L_{name}_done")
            e(f"s_sleep {sleep}")
            e(f"s_branch L_{name}")
        else:
            e(f"s_cbranch_scc0 L_{name}")
        e(f"L_{name}_done:")

    KB, VB, QB, DT, RB, CB, ACC = 8, 72, 136, 140, 144, 148, 152
    stamp(0)
    e("s_load_dwordx16 s[16:31], s[0:1], 0")
    e("v_lshrrev_b32 v1, 6, v0")
    e("s_cmp_ge_u32 s2, 256")
    e("s_cbranch_scc1 L_end")
    e("v_readfirstlane_b32 s3, v1")
    e("v_and_b32 v0, 63, v0")
    e("s_lshr_b32 s5, s2, 3")
    e("s_cmp_lt_u32 s3, 4")
    e("s_cbranch_scc1 L_helper")

    e("s_setprio 3")
    e("s_sub_u32 s6, s3, 4")
    e("s_lshl_b32 s10, s2, 19")
    e("s_lshl_b32 s11, s6, 14")
    e("s_add_u32 s10, s10, s11")
    e(f"s_add_u32 s10, s10, {1536*256}")
    e("s_lshl_b32 s11, s5, 12")
    e("s_xor_b32 s10, s10, s11")
    e("v_and_b32 v3, 3, v0")
    e("v_bfe_u32 v4, v0, 2, 2")
    e("v_lshrrev_b32 v5, 4, v0")
    e("v_lshlrev_b32 v5, 6, v5")
    e("v_lshl_add_u32 v1, v4, 8, v5")
    e("v_lshl_add_u32 v1, v3, 4, v1")
    e("v_lshlrev_b32 v2, 4, v0")
    srd_c(32, 0x8000000); srd_c(36, 0x8000000)
    e("v_mov_b32 v4, 0"); e("v_mov_b32 v5, 0"); e("v_mov_b32 v6, 0"); e("v_mov_b32 v7, 0")
    tcount = [0]
    def thr(n):
        if cfg.boost:
            tcount[0] += 1
            e(f"s_waitcnt vmcnt({n + cfg.boost})")
            e(f"s_cbranch_vccnz L_thr{tcount[0]}")
            e(f"s_waitcnt vmcnt({n})")
            e(f"L_thr{tcount[0]}:")
        else:
            e(f"s_waitcnt vmcnt({n})")
    if cfg.boost:
        e("s_and_b32 s11, s5, 7")
        e("s_cmp_eq_u32 s11, 3")
        e(f"s_cselect_b32 s12, {cfg.nb3}, 0")
        if cfg.nbodd:
            e("s_getreg_b32 s11, hwreg(HW_REG_XCC_ID, 0, 1)")
            e(f"s_mul_i32 s11, s11, {cfg.nbodd}")
            e("s_add_u32 s12, s12, s11")
        e("s_cmp_lt_u32 s6, s12")
        e("s_cselect_b64 vcc, -1, 0")
    e("s_waitcnt lgkmcnt(0)")
    srd_p(32, 18); srd_p(36, 20)
    first = 3 if cfg.nk_thr is None else cfg.nk_thr + 1
    n = 0
    for i in range(16):
        if i % 4 == 0 and i: e(f"s_xor_b32 s11, s10, {(i//4)*4096}")
        r = KB + 4*i
        e(f"buffer_load_dwordx4 v[{r}:{r+3}], v1, s[32:35], {'s11' if i >= 4 else 's10'} offen offset:{(i%4)*1024} nt")
        n += 1
        if n == first:
            e("s_setprio 0")
            e("ds_write_b128 v4, v[4:7]")
            e("s_waitcnt lgkmcnt(0)")
            e("s_barrier")
        if cfg.nk_thr is not None and n > cfg.nk_thr: thr(cfg.nk_thr)
        if n % 2 == 0 and n < 16: stamp(5 + n // 2)
    if cfg.stamps:
        for j in (13, 14, 15):
            e(f"s_mov_b64 s[{64+2*j}:{65+2*j}], 0")
    stamp(1)
    e(f"s_mov_b32 s12, {cfg.spin_max}")
    npre = min(16, cfg.nv_pre + cfg.nv_extra)
    def vload(i):
        if i % 4 == 0 or i == npre: e(f"s_xor_b32 s13, s10, {(i//4)*4096}")
        r = VB + 4*i
        e(f"buffer_load_dwordx4 v[{r}:{r+3}], v2, s[36:39], s13 offen offset:{(i%4)*1024} nt")
    for i in range(npre):
        vload(i)
        if cfg.nv_thr is not None and i < cfg.nv_pre: thr(cfg.nv_thr)
    stamp(2)
    e("s_mov_b32 s8, 0x05040100")
    e("s_mov_b32 s9, 0x07060302")
    e("s_mov_b32 s14, 0x3e0293ee")
    lds_spin("tq", L_FLAG+4, "eq", 1, 4, 6, 12)
    e(f"ds_read_b128 v[{QB}:{QB+3}], v2 offset:{L_Q}")
    e(f"s_waitcnt vmcnt({npre}) lgkmcnt(0)")
    stamp(3)
    D = lambda l: DT if l == 0 else KB + 4*(l-1)
    def red12(l):
        tb = (l >> 1) & 3; t2 = tb ^ 1
        dpp("v_add_f32", D(l)+tb, D(l)+(tb^2), D(l)+tb, "row_ror:8")
        dpp("v_add_f32", D(l)+t2, D(l)+(t2^2), D(l)+t2, "row_ror:8")
    def red3(l):
        tb = (l >> 1) & 3; t2 = tb ^ 1
        dpp("v_add_f32", RB + (l >> 3)*2 + (l & 1), D(l)+t2, D(l)+tb, f"row_ror:{4*((tb-t2)&3)}", 1 << tb)
    LAG = 4
    masks = ["s_mov_b32 s48, 0x000f000f", "s_mov_b32 s49, 0x000f000f", "s_mov_b32 s50, 0x00f000f0", "s_mov_b32 s51, 0x00f000f0",
             "s_mov_b32 s52, 0x0f000f00", "s_mov_b32 s53, 0x0f000f00", "s_mov_b32 s54, 0xf000f000", "s_mov_b32 s55, 0xf000f000"]
    for l in range(16 + LAG + 1):
        if l < 16:
            a = KB + 4*l
            e(f"v_mfma_f32_16x16x32_bf16 v[{D(l)}:{D(l)+3}], v[{a}:{a+3}], v[{QB}:{QB+3}], 0")
            if l < LAG: e(masks[2*l]); e(masks[2*l+1])
        if 0 <= l - LAG < 16: red12(l - LAG)
        if 0 <= l - LAG - 1 < 16: red3(l - LAG - 1)
        if l == 16 + LAG - 1: e("s_nop 0")
    e(f"v_max3_f32 v5, v{RB}, v{RB+1}, v{RB+2}")
    e(f"v_max_f32 v5, v5, v{RB+3}")
    e("s_lshl_b32 s11, s6, 3")
    e("v_lshl_add_u32 v3, v3, 6, s11")
    dpp("v_max_f32", 5, 5, 5, "row_ror:8")
    e("s_lshl_b32 s11, s6, 11")
    e("v_add_u32 v1, s11, v2")
    dpp("v_max_f32", 5, 5, 5, "row_ror:4")
    e("v_mov_b32 v6, v5")
    e("s_nop 1")
    e("v_permlane32_swap_b32 v5, v6")
    e("v_max_f32 v5, v5, v6")
    e("v_mov_b32 v6, v5")
    e("s_nop 1")
    e("v_permlane16_swap_b32 v5, v6")
    e("v_max_f32 v5, v5, v6")
    e("v_mul_f32 v6, s14, v5")
    for i in range(4):
        e(f"v_fma_f32 v{RB+i}, v{RB+i}, s14, -v6")
    for i in range(4):
        e(f"v_exp_f32 v{RB+i}, v{RB+i}")
    e("v_mov_b32 v150, 1")
    e(f"v_add_f32 v7, v{RB}, v{RB+1}")
    e(f"v_add_f32 v5, v{RB+2}, v{RB+3}")
    e("v_add_f32 v7, v7, v5")
    e(f"v_cvt_pk_bf16_f32 v{CB}, v{RB}, v{RB+1}")
    e(f"v_cvt_pk_bf16_f32 v{CB+1}, v{RB+2}, v{RB+3}")
    PM = KB
    cm = [f"v_cndmask_b32 v{PM+16*u+4*k+k}, 0, v{CB+u}, s[{48+2*k}:{49+2*k}]" for u in range(2) for k in range(4)]
    dpp("v_add_f32", 7, 7, 7, "row_ror:8")
    e(cm[0]); e(cm[1])
    dpp("v_add_f32", 7, 7, 7, "row_ror:4")
    e("v_mov_b32 v5, v7")
    e(cm[2]); e(cm[3])
    e("v_permlane32_swap_b32 v7, v5"); e("v_add_f32 v7, v7, v5"); e("v_mov_b32 v5, v7")
    e(cm[4]); e(cm[5])
    e("v_permlane16_swap_b32 v7, v5"); e("v_add_f32 v7, v7, v5")
    e(f"ds_write_b64 v3, v[6:7] offset:{L_ML}")
    e("s_mov_b64 exec, 1")
    e(f"ds_add_u32 v4, v150 offset:{L_FLAG+12}")
    e("s_mov_b64 exec, -1")
    for i in range(npre, 16):
        vload(i)
    e("s_mov_b64 exec, 1")
    e(f"ds_add_u32 v4, v150 offset:{L_FLAG+8}")
    e("s_mov_b64 exec, -1")
    e(cm[6]); e(cm[7])
    for u in range(2):
        for q4 in range(4):
            for k in range(4):
                if k == q4: continue
                dpp("v_mov_b32", PM+16*u+4*q4+k, PM+16*u+4*k+k, None, f"row_ror:{4*((q4-k)&3)}")
    stamp(4)
    for u in range(2):
        TB = KB + 32 if u == 0 else VB
        for ip in range(4):
            rem = 16 - (8*u + 2*ip + 2)
            e(f"s_waitcnt vmcnt({rem})")
            r0 = VB + 32*u + 8*ip; r1 = r0 + 4
            for w in range(4):
                e(f"v_perm_b32 v{TB+4*(2*w)+ip}, v{r1+w}, v{r0+w}, s8")
                e(f"v_perm_b32 v{TB+4*(2*w+1)+ip}, v{r1+w}, v{r0+w}, s9")
        for j in (0, 1, 4, 2, 5, 3, 6, 7):
            a = ACC + 4*(j >> 2)
            src = "0" if (u == 0 and (j & 3) == 0) else f"v[{a}:{a+3}]"
            b = PM + 16*u + 4*(j & 3)
            e(f"v_mfma_f32_16x16x32_bf16 v[{a}:{a+3}], v[{TB+4*j}:{TB+4*j+3}], v[{b}:{b+3}], {src}")
    e("s_nop 5")
    e(f"ds_write_b128 v1, v[{ACC}:{ACC+3}] offset:{L_PART}")
    e("s_nop 0")
    e(f"ds_write_b128 v1, v[{ACC+4}:{ACC+7}] offset:{L_PART+1024}")
    e("s_waitcnt lgkmcnt(0)")
    stamp(5)
    e("s_barrier")
    if cfg.stamps:
        e("s_barrier")
    write_stamps()
    e("s_endpgm")

    WQ, WO, TQ, TO, XB = 8, 40, 72, 104, 136
    e("L_helper:")
    e("s_and_b32 s4, s2, 7")
    e("s_lshl_b32 s62, s2, 13")
    e("s_lshr_b32 s6, s5, 3")
    e("s_and_b32 s7, s5, 7")
    e("s_and_b32 s59, s6, 1")
    e("s_lshr_b32 s58, s6, 1")
    e("v_lshrrev_b32 v1, 4, v0")
    e("v_and_b32 v3, 15, v0")
    e("v_lshlrev_b32 v7, 4, v1")
    e("v_lshl_add_u32 v5, v3, 10, v7")
    e("v_lshlrev_b32 v6, 16, v1")
    e("v_lshl_add_u32 v6, v3, 3, v6")
    e("s_lshl_b32 s63, s58, 14"); e("s_lshl_b32 s11, s59, 9"); e("s_add_u32 s63, s63, s11")
    e("s_lshl_b32 s10, s3, 7"); e("s_add_u32 s63, s63, s10"); e("s_add_u32 s10, s10, s11")
    e("s_lshl_b32 s12, s10, 12")
    e("s_lshl_b32 s11, s4, 10"); e("s_add_u32 s12, s12, s11")
    e("s_lshl_b32 s14, s7, 7"); e("s_add_u32 s12, s12, s14")
    srd_c(32, 0x8000); srd_c(36, 0x400000); srd_c(44, WS_USED); srd_c(48, 256)
    for r in range(144, 148): e(f"v_mov_b32 v{r}, -1")
    e("v_lshlrev_b32 v155, 4, v0")
    e("v_lshlrev_b32 v156, 4, v3")
    e("s_lshl_b32 s15, s58, 3"); e("s_add_u32 s15, s15, s4"); e("s_lshl_b32 s15, s15, 4")
    e("s_getreg_b32 s61, hwreg(HW_REG_XCC_ID, 0, 3)")
    e("s_mul_i32 s11, s61, s61"); e("s_lshl_b32 s11, s11, 8"); e("s_add_u32 s61, s61, s11"); e("s_add_u32 s61, s61, 0x100000")
    e("s_lshl_b32 s57, s61, 4")
    e(f"s_add_u32 s60, s62, {S_P}")
    e("s_cmp_lg_u32 s3, 0")
    e("s_waitcnt lgkmcnt(0)")
    srd_p(44, 30); srd_p(32, 16); srd_p(36, 22); srd_p(48, 28)
    e("s_cbranch_scc1 L_noclear")
    for k in range(3):
        e(f"buffer_store_dwordx4 v[144:147], v155, s[44:47], s62 offen offset:{1024*k} sc1")
    for k in range(4):
        e(f"buffer_store_dwordx4 v[144:147], v155, s[44:47], s60 offen offset:{1024*k} sc1")
    e("L_noclear:")
    seq = [("x", 0, 0), ("x", 1, 0)] + [("wq", r, i) for r in range(2) for i in range(8)]
    pos = {x: n for n, x in enumerate(seq)}
    for n, (k, r, i) in enumerate(seq):
        if k == "wq":
            d = WQ + 16*r + 2*i
            if r or i: e(f"s_add_u32 s11, s12, {(r*32+i)*8192}")
            e(f"buffer_load_dwordx2 v[{d}:{d+1}], v6, s[36:39], {'s11' if (r or i) else 's12'} offen nt")
        elif k == "x":
            e(f"buffer_load_dwordx4 v[{XB+4*r}:{XB+4*r+3}], v5, s[32:35], s63 offen offset:{64*r} {cfg.xnt}")
        if n == cfg.h_thr:
            e("s_setprio 3")
            e("s_barrier")
        if n >= cfg.h_thr and n < len(seq) - 1: e(f"s_waitcnt vmcnt({cfg.h_thr})")
        if n == cfg.h_thr:
            e("s_cmp_lg_u32 s3, 0")
            e("s_cbranch_scc1 L_noarr")
            e("s_atomic_add s61, s[28:29], s15 glc")
            e("L_noarr:")
        if n == cfg.chk_at:
            e("s_mov_b32 s97, 0")
            e("s_cmp_lg_u32 s3, 0")
            e("s_cbranch_scc1 L_nochk")
            e("s_waitcnt lgkmcnt(0)")
            e("s_atomic_add s97, s[28:29], s15 glc")
            e("L_nochk:")
    if cfg.stamps:
        for j in range(1, NST):
            e(f"s_mov_b64 s[{64+2*j}:{65+2*j}], 0")
    stamp(13)
    e("s_mov_b32 s8, 0x05040100")
    e("s_mov_b32 s9, 0x07060302")
    srd_p(52, 26); srd_c(52, 0x8000)
    srd_p(40, 24); srd_c(40, 0x400000)
    e("v_and_b32 v4, 1, v1"); e("v_lshlrev_b32 v4, 8, v4")
    e("v_lshrrev_b32 v2, 1, v1"); e("v_add_u32 v4, v4, v2")
    e("v_lshlrev_b32 v4, 10, v4"); e("v_lshl_add_u32 v4, v3, 3, v4")
    e("s_lshl_b32 s13, s4, 19"); e("s_add_u32 s13, s13, s14")
    e("s_lshl_b32 s11, s3, 15"); e("s_add_u32 s13, s13, s11")
    e("s_lshl_b32 s11, s59, 12"); e("s_add_u32 s13, s13, s11")
    e("s_lshl_b32 s12, s58, 7"); e("s_add_u32 s12, s12, s4"); e("s_lshl_b32 s12, s12, 13")
    e("s_add_u32 s10, s10, s12"); e(f"s_add_u32 s10, s10, {S_O}")
    e("v_lshl_add_u32 v5, v3, 16, v7")
    e("s_lshl_b32 s63, s3, 18"); e("s_add_u32 s63, s63, s12"); e("s_add_u32 s63, s63, s14")
    e("s_lshl_b32 s11, s59, 10"); e("s_add_u32 s63, s63, s11")
    e("v_lshlrev_b32 v162, 16, v1"); e("v_lshl_add_u32 v162, v3, 3, v162")
    e("s_lshl_b32 s11, s3, 8"); e("s_add_u32 s96, s62, s11"); e(f"s_add_u32 s96, s96, {S_O}")
    e("v_lshlrev_b32 v160, 2, v0")
    e("s_lshl_b32 s12, s6, 3"); e("s_add_u32 s12, s12, s4"); e("s_lshl_b32 s12, s12, 10"); e("s_add_u32 s12, s12, s14")
    e("s_lshl_b32 s14, s58, 7"); e("s_lshr_b32 s11, s3, 1"); e("s_lshl_b32 s11, s11, 6"); e("s_add_u32 s14, s14, s11")
    e("s_lshl_b32 s11, s7, 3"); e("s_add_u32 s14, s14, s11")
    e("s_and_b32 s11, s3, 1"); e("s_lshl_b32 s11, s11, 2"); e("s_add_u32 s14, s14, s11")
    e("s_lshl_b32 s14, s14, 13")
    e("s_lshl_b32 s11, s4, 1"); e("s_add_u32 s11, s11, s59"); e("s_lshl_b32 s11, s11, 8"); e("s_add_u32 s14, s14, s11")
    e(f"s_add_u32 s14, s14, {S_P}")
    e("v_lshlrev_b32 v161, 13, v1"); e("v_lshl_add_u32 v161, v3, 4, v161")
    e("s_mov_b32 s58, 0x11111111"); e("s_mov_b32 s59, 0x11111111")
    e("v_mov_b32 v152, 0"); e("v_mov_b32 v153, 1")
    e("v_mul_u32_u24 v149, 288, v1")
    e("v_lshl_add_u32 v149, v3, 4, v149")
    e("s_mul_i32 s11, s3, 5120")
    e("v_add_u32 v149, s11, v149")
    e("v_bfe_u32 v157, v0, 2, 2")
    e("v_mul_u32_u24 v150, 288, v157")
    e("v_add_u32 v150, v150, v7")
    e("v_and_b32 v151, 3, v0")
    e("v_lshl_add_u32 v150, v151, 2, v150")
    e("s_lshl_b32 s11, s3, 6"); e(f"s_add_u32 s11, s11, {L_RED}")
    e("v_add_u32 v150, s11, v150")

    def transpose(W, T, remf, thr, lo=0, hi=8):
        for r in range(2):
            for ip in range(4):
                if not (lo <= 4*r + ip < hi): continue
                rem = remf(r, 2*ip + 1)
                if rem <= thr: e(f"s_waitcnt vmcnt({rem})")
                r0 = W + 16*r + 4*ip; r1 = r0 + 2
                for w in range(2):
                    e(f"v_perm_b32 v{T+16*r+4*(2*w)+ip}, v{r1+w}, v{r0+w}, s8")
                    e(f"v_perm_b32 v{T+16*r+4*(2*w+1)+ip}, v{r1+w}, v{r0+w}, s9")
    AC = 8
    def proj_mfma(T):
        for r in range(2):
            for j in range(4):
                a = AC + 4*j
                src = "0" if r == 0 else f"v[{a}:{a+3}]"
                t = T + 16*r + 4*j
                e(f"v_mfma_f32_16x16x32_bf16 v[{a}:{a+3}], v[{t}:{t+3}], v[{XB+4*r}:{XB+4*r+3}], {src}")
        e("s_nop 4")
        for j in range(4):
            a = AC + 4*j
            e(f"ds_write_b128 v149, v[{a}:{a+3}] offset:{L_RED + 1280*j}")
    def reduce():
        for w in range(4):
            for jp in range(2):
                e(f"ds_read2st64_b32 v[{24+4*w+2*jp}:{25+4*w+2*jp}], v150 offset0:{5*(4*w+2*jp)} offset1:{5*(4*w+2*jp+1)}")
        e("s_waitcnt lgkmcnt(4)")
        e("v_pk_add_f32 v[24:25], v[24:25], v[28:29]")
        e("v_pk_add_f32 v[26:27], v[26:27], v[30:31]")
        e("s_waitcnt lgkmcnt(2)")
        e("v_pk_add_f32 v[24:25], v[24:25], v[32:33]")
        e("v_pk_add_f32 v[26:27], v[26:27], v[34:35]")
        e("s_waitcnt lgkmcnt(0)")
        e("v_pk_add_f32 v[24:25], v[24:25], v[36:37]")
        e("v_pk_add_f32 v[26:27], v[26:27], v[38:39]")
    def gather4(r):
        e("s_nop 1")
        dpp("v_mov_b32", r+1, r, None, "quad_perm:[1,1,1,1]")
        dpp("v_mov_b32", r+2, r, None, "quad_perm:[2,2,2,2]")
        dpp("v_mov_b32", r+3, r, None, "quad_perm:[3,3,3,3]")
    def gather2(r):
        e("s_nop 1")
        dpp("v_mov_b32", r+2, r, None, "quad_perm:[1,1,3,3]")
        dpp("v_mov_b32", r+3, r+1, None, "quad_perm:[1,1,3,3]")

    transpose(WQ, TQ, lambda r, i: len(seq) - 1 - pos[("wq", r, i)], cfg.h_thr)
    e("s_nop 0")
    stamp(1)
    proj_mfma(TQ)
    e(f"s_mov_b32 s61, {cfg.spin_max}")
    e("s_mov_b32 s56, 0x1000000")
    e("s_cmp_lg_u32 s3, 0")
    e("s_cbranch_scc1 L_gc_skip")
    e("L_gc:")
    e("s_waitcnt lgkmcnt(0)")
    e("s_cmp_ge_u32 s97, s56")
    e("s_cbranch_scc1 L_gc_done")
    e("s_sub_u32 s61, s61, 1")
    e("s_cbranch_scc1 L_gc_done")
    e("s_sleep 8")
    e("s_mov_b32 s97, 0")
    e("s_atomic_add s97, s[28:29], s15 glc")
    e("s_branch L_gc")
    e("L_gc_done:")
    e("v_mov_b32 v154, s97")
    e(f"ds_write_b32 v152, v154 offset:{L_FLAG+16}")
    e("L_gc_skip:")
    stamp(4)
    e(f"s_mov_b32 s15, {cfg.spin_max}")
    e("s_mov_b64 exec, 1")
    e(f"ds_add_u32 v152, v153 offset:{L_FLAG}")
    e("s_mov_b64 exec, -1")
    lds_spin("hs1", L_FLAG, "ge", 4, 152, 154, 15, sleep=0)
    e(f"ds_read_b32 v154, v152 offset:{L_FLAG+16}")
    reduce()
    e("v_readfirstlane_b32 s97, v154")
    e("v_cvt_pk_bf16_f32 v164, v24, v25")
    e("v_cvt_pk_bf16_f32 v165, v26, v27")
    e("v_min_u32 v164, -2, v164")
    e("v_min_u32 v165, -2, v165")
    gather2(164)
    e("s_mov_b32 exec_lo, 0x55555555"); e("s_mov_b32 exec_hi, 0x55555555")
    if cfg.local:
        e("s_cmp_eq_u32 s97, s57")
        e("s_cbranch_scc1 L_ql")
        e("buffer_store_dwordx4 v[164:167], v162, s[44:47], s63 offen sc1")
        e("s_branch L_qg")
        e("L_ql:")
        e("buffer_store_dwordx4 v[164:167], v162, s[44:47], s63 offen")
        e("L_qg:")
    else:
        e("buffer_store_dwordx4 v[164:167], v162, s[44:47], s63 offen sc1")
    e("s_mov_b64 exec, -1")
    stamp(2)
    e("s_cmp_lg_u32 s3, 0")
    e("s_cbranch_scc1 L_noq")
    e("v_lshl_add_u32 v157, v1, 2, v157")
    e("v_lshlrev_b32 v157, 4, v157")
    e("v_lshl_add_u32 v157, v151, 8, v157")
    e("L_qp:")
    e("buffer_load_dwordx4 v[8:11], v157, s[44:47], s62 offen sc1")
    e("buffer_load_dwordx4 v[12:15], v157, s[44:47], s62 offen offset:1024 sc1")
    e("s_waitcnt vmcnt(0)")
    e("v_max3_u32 v16, v8, v9, v10")
    e("v_max3_u32 v17, v11, v12, v13")
    e("v_max3_u32 v16, v16, v14, v15")
    e("v_max_u32 v16, v16, v17")
    e("v_cmp_eq_u32 vcc, -1, v16")
    e("s_sub_u32 s15, s15, 1")
    e("s_cbranch_scc1 L_qp_done")
    e("s_cbranch_vccnz L_qp")
    e("L_qp_done:")
    for k in range(4):
        e(f"v_lshlrev_b32 v16, 16, v{8+k}"); e(f"v_lshlrev_b32 v17, 16, v{12+k}")
        e(f"v_and_b32 v18, 0xffff0000, v{8+k}"); e(f"v_and_b32 v19, 0xffff0000, v{12+k}")
        e("v_add_f32 v16, v16, v17"); e("v_add_f32 v18, v18, v19")
        e(f"v_cvt_pk_bf16_f32 v{20+k}, v16, v18")
    e(f"ds_write_b128 v155, v[20:23] offset:{L_Q}")
    e(f"ds_write_b32 v152, v153 offset:{L_FLAG+4}")
    stamp(5)
    e("L_noq:")
    e("s_lshl_b32 s11, s3, 9")
    e("v_lshl_add_u32 v6, v0, 3, s11")
    e("v_bfe_u32 v7, v0, 1, 2")
    e("v_lshlrev_b32 v7, 6, v7")
    e("v_lshrrev_b32 v157, 5, v0")
    e("v_lshlrev_b32 v158, 3, v3")
    e("v_lshl_add_u32 v158, v157, 2, v158")
    e(f"s_mov_b32 s15, {cfg.spin_max}")
    def woload(n):
        r, i = n >> 3, n & 7
        d = WO + 16*r + 2*i
        rows = (i >> 2)*128 + (i & 3)*8
        e(f"s_add_u32 s11, s13, {rows*1024}")
        e(f"buffer_load_dwordx2 v[{d}:{d+1}], v4, s[40:43], s11 offen offset:{r*2048} nt")
    for n in range(cfg.nearly):
        woload(n)
        if n >= cfg.ho_thr: e(f"s_waitcnt vmcnt({cfg.ho_thr})")
    if cfg.nearly:
        e("s_waitcnt vmcnt(0)")
        transpose(WO, TO, lambda r, i: 99, 0, 0, cfg.nearly // 2)
    def weights():
        for k in range(4):
            e(f"ds_read_b128 v[{8+4*k}:{11+4*k}], v7 offset:{L_ML+16*k}")
        e("s_waitcnt lgkmcnt(0)")
        e("v_max3_f32 v24, v8, v10, v12")
        e("v_max3_f32 v25, v14, v16, v18")
        e("v_max3_f32 v24, v24, v20, v22")
        e("v_max_f32 v24, v24, v25")
        for w in range(8):
            e(f"v_sub_f32 v{8+2*w}, v{8+2*w}, v24")
        for w in range(8):
            e(f"v_exp_f32 v{8+2*w}, v{8+2*w}")
        e("v_mul_f32 v25, v8, v9")
        e("v_mul_f32 v26, v10, v11")
        for w in range(2, 8):
            e(f"v_fmac_f32 v{25+(w&1)}, v{8+2*w}, v{9+2*w}")
        e("v_add_f32 v25, v25, v26")
        e("v_rcp_f32 v25, v25")
        e("s_nop 0")
        for w in range(8):
            e(f"v_mul_f32 v{8+2*w}, v{8+2*w}, v25")
    lds_spin("w0", L_FLAG+12, "ge", 8, 152, 154, 15, sleep=2)
    weights()
    if cfg.wo_at:
        lds_spin("w1", L_FLAG+8, "ge", cfg.wo_at, 152, 154, 15, sleep=1)
    stamp(3)
    e("buffer_load_dword v159, v156, s[48:51], 0 offen sc1")
    for n in range(cfg.nearly, 16): woload(n)
    e("s_cmp_eq_u32 s97, s57")
    stamp(6)
    e("s_barrier")
    stamp(7)
    for w in range(8):
        e(f"ds_read_b64 v[{24+2*w}:{25+2*w}], v6 offset:{L_PART+2048*w}")
    e("s_waitcnt lgkmcnt(6)")
    e("v_pk_mul_f32 v[72:73], v[24:25], v[8:9] op_sel_hi:[1,0]")
    e("v_pk_mul_f32 v[74:75], v[26:27], v[10:11] op_sel_hi:[1,0]")
    for w in range(2, 8):
        if w % 2 == 0: e(f"s_waitcnt lgkmcnt({6-w})")
        d = 72 + 2*(w & 1)
        e(f"v_pk_fma_f32 v[{d}:{d+1}], v[{24+2*w}:{25+2*w}], v[{8+2*w}:{9+2*w}], v[{d}:{d+1}] op_sel_hi:[1,0,1]")
    e("v_pk_add_f32 v[72:73], v[72:73], v[74:75]")
    e("v_cvt_pk_bf16_f32 v72, v72, v73")
    e("v_min_u32 v72, -2, v72")
    gather4(72)
    e("s_mov_b64 exec, s[58:59]")
    if cfg.local:
        e("s_cbranch_scc1 L_ol")
        e("buffer_store_dwordx4 v[72:75], v160, s[44:47], s96 offen sc1")
        e("s_branch L_og")
        e("L_ol:")
        e("buffer_store_dwordx4 v[72:75], v160, s[44:47], s96 offen")
        e("L_og:")
    else:
        e("buffer_store_dwordx4 v[72:75], v160, s[44:47], s96 offen sc1")
    e("s_mov_b64 exec, -1")
    stamp(8)
    def opoll():
        e(f"buffer_load_dwordx4 v[{XB}:{XB+3}], v5, s[44:47], s10 offen sc1")
        e(f"buffer_load_dwordx4 v[{XB+4}:{XB+7}], v5, s[44:47], s10 offen offset:64 sc1")
    opoll()
    transpose(WO, TO, lambda r, i: 15 - (8*r + i) + 3, 99, cfg.nearly // 2, 8)
    if cfg.nearly == 16: e("s_waitcnt vmcnt(3)")
    e("L_ga:")
    e("v_cmp_gt_u32 vcc, s56, v159")
    stamp(14)
    e("s_cbranch_vccz L_opw")
    e("s_sub_u32 s15, s15, 1")
    e("s_cbranch_scc1 L_opw")
    e("s_sleep 16")
    e("buffer_load_dword v159, v156, s[48:51], 0 offen sc1")
    e("s_waitcnt vmcnt(0)")
    e("s_branch L_ga")
    e("L_op:")
    opoll()
    e("L_opw:")
    def mf(n):
        r, j = n >> 2, n & 3
        a = AC + 4*j
        src = "0" if r == 0 else f"v[{a}:{a+3}]"
        t = TO + 16*r + 4*j
        e(f"v_mfma_f32_16x16x32_bf16 v[{a}:{a+3}], v[{t}:{t+3}], v[{XB+4*r}:{XB+4*r+3}], {src}")
    e("s_waitcnt vmcnt(1)")
    if cfg.spec: mf(0)
    e(f"v_max3_u32 v40, v{XB}, v{XB+1}, v{XB+2}")
    if cfg.spec: mf(1)
    e("s_waitcnt vmcnt(0)")
    e(f"v_max3_u32 v41, v{XB+3}, v{XB+4}, v{XB+5}")
    e(f"v_max3_u32 v40, v40, v{XB+6}, v{XB+7}")
    if cfg.spec: mf(2)
    e("v_max_u32 v40, v40, v41")
    e("v_cmp_eq_u32 vcc, -1, v40")
    if cfg.spec: mf(3)
    e("s_cbranch_vccz L_op_done")
    e("s_sub_u32 s15, s15, 1")
    e("s_cbranch_scc0 L_op")
    e("L_op_done:")
    stamp(9)
    for n in range(4 if cfg.spec else 0, 8): mf(n)
    e("s_nop 4")
    for j in range(4):
        a = AC + 4*j
        e(f"ds_write_b128 v149, v[{a}:{a+3}] offset:{L_RED + 1280*j}")
    e("s_waitcnt lgkmcnt(0)")
    e("s_barrier")
    reduce()
    for k in range(4): e(f"v_min_u32 v{24+k}, -2, v{24+k}")
    e("buffer_store_dwordx4 v[24:27], v161, s[44:47], s14 offen sc1")
    stamp(10)
    e("s_cmp_lg_u32 s3, 0")
    e("s_cbranch_scc1 L_hend")
    e(f"s_mov_b32 s15, {cfg.spin_max}")
    e("L_fp:")
    for k in range(4):
        e(f"buffer_load_dwordx4 v[{8+4*k}:{11+4*k}], v155, s[44:47], s60 offen offset:{1024*k} sc1")
    e("s_waitcnt vmcnt(0)")
    e("v_max3_u32 v40, v8, v9, v10")
    e("v_max3_u32 v41, v11, v12, v13")
    e("v_max3_u32 v42, v14, v15, v16")
    e("v_max3_u32 v43, v17, v18, v19")
    e("v_max3_u32 v40, v40, v20, v21")
    e("v_max3_u32 v41, v41, v22, v23")
    e("v_max3_u32 v40, v40, v42, v43")
    e("v_max_u32 v40, v40, v41")
    e("v_cmp_eq_u32 vcc, -1, v40")
    e("s_cbranch_vccz L_fp_done")
    e("s_sub_u32 s15, s15, 1")
    e("s_cbranch_scc0 L_fp")
    e("L_fp_done:")
    stamp(11)
    e("v_pk_add_f32 v[8:9], v[8:9], v[12:13]")
    e("v_pk_add_f32 v[10:11], v[10:11], v[14:15]")
    e("v_pk_add_f32 v[16:17], v[16:17], v[20:21]")
    e("v_pk_add_f32 v[18:19], v[18:19], v[22:23]")
    e("v_pk_add_f32 v[8:9], v[8:9], v[16:17]")
    e("v_pk_add_f32 v[10:11], v[10:11], v[18:19]")
    e("s_nop 1")
    e("v_permlane32_swap_b32 v8, v10")
    e("v_permlane32_swap_b32 v9, v11")
    e("v_add_f32 v8, v8, v10")
    e("v_add_f32 v9, v9, v11")
    e("v_mov_b32 v10, v8"); e("v_mov_b32 v11, v9")
    e("s_nop 1")
    e("v_permlane16_swap_b32 v8, v10")
    e("v_permlane16_swap_b32 v9, v11")
    e("v_add_f32 v8, v8, v10")
    e("v_add_f32 v9, v9, v11")
    e("v_cvt_pk_bf16_f32 v8, v8, v9")
    e("s_mov_b32 exec_lo, 0x0000ffff"); e("s_mov_b32 exec_hi, 0x0000ffff")
    e("buffer_store_dword v8, v158, s[52:55], s12 offen")
    if cfg.stamps or lk:
        e("s_waitcnt vmcnt(0)")
    stamp(12)
    if lk:
        if cfg.lsel:
            reg, val = cfg.lsel.split(",")
            e(f"s_cmp_lg_u32 {reg}, {val}")
            e("s_cbranch_scc1 L_hend")
        e("s_memrealtime s[98:99]")
        e("s_waitcnt lgkmcnt(0)")
        e(f"s_sub_u32 s11, s{64+2*lk[1]}, s{64+2*lk[0]}")
        if len(lk) > 3:
            e(f"s_min_u32 s11, s11, {lk[3]}")
            e(f"s_sub_u32 s11, {lk[3]}, s11")
        e(f"s_mul_i32 s11, s11, {lk[2]}")
        e("s_min_u32 s11, s11, 20000")
        e("L_leak:")
        e("s_memrealtime s[100:101]")
        e("s_waitcnt lgkmcnt(0)")
        e("s_sub_u32 s12, s100, s98")
        e("s_cmp_lt_u32 s12, s11")
        e("s_cbranch_scc1 L_leak")
    e("L_hend:")
    write_stamps()
    e("L_end:")
    e("s_endpgm")

    body = "\n".join(x if x.endswith(":") else "    " + x for x in L)
    return (HDR + f"; @launch grid=(256,1,1) block=(768,1,1) lds={LDS_BYTES}\n"
        + f""".amdgcn_target "amdgcn-amd-amdhsa--gfx950"
.text
.globl {KN}_kernel
.p2align 8
.type {KN}_kernel,@function
{KN}_kernel:
""" + body + f"""
.section .rodata,"a"
.p2align 6
.amdhsa_kernel {KN}_kernel
  .amdhsa_next_free_vgpr 168
  .amdhsa_next_free_sgpr 102
  .amdhsa_accum_offset 168
  .amdhsa_group_segment_fixed_size 0
  .amdhsa_kernarg_size 64
  .amdhsa_user_sgpr_count 2
  .amdhsa_user_sgpr_kernarg_segment_ptr 1
  .amdhsa_system_sgpr_workgroup_id_x 1
.end_amdhsa_kernel
""")

if __name__ == "__main__":
    cfg = Cfg()
    out = sys.argv[1]
    for kv in sys.argv[2:]:
        k, v = kv.split("=")
        assert hasattr(cfg, k), k
        if v == "None": v = None
        elif v in ("True", "False"): v = (v == "True")
        else:
            try: v = int(v, 0)
            except ValueError: v = v.replace("+", " ")
        setattr(cfg, k, v)
    txt = gen(cfg)
    sys.path.insert(0, os.path.dirname(__file__))
    import hazcheck
    assert hazcheck.check(txt) == 0
    open(out, "w").write(txt)
```

```python
import sys, os
KN = "standalone__sliding_block_cached__sampling"

HDR = """; Kernarg layout for this problem (64 bytes, ptrs only, base s[0:1]):
;   offset   0: d_in[0] x  shape=(32, 1, 512) dtype=bfloat16 strides=(1024, 1024, 2) contiguous=True
;   offset   8: d_in[1] k_cache  shape=(32, 8, 2048, 128) dtype=bfloat16 strides=(4194304, 524288, 256, 2) contiguous=True
;   offset  16: d_in[2] v_cache  shape=(32, 8, 2048, 128) dtype=bfloat16 strides=(4194304, 524288, 256, 2) contiguous=True
;   offset  24: d_in[3] wq  shape=(512, 4096) dtype=bfloat16 strides=(8192, 2) contiguous=True
;   offset  32: d_in[4] wo  shape=(4096, 512) dtype=bfloat16 strides=(1024, 2) contiguous=True
"""

class Cfg:
    stamps = False
    nk_thr = 2
    nv_thr = 2
    nv_pre = 8
    nv_extra = 3
    h_thr = 5
    wo_at = 8
    nearly = 0
    ho_thr = 3
    chk_at = 17
    spec = True
    spin_max = 0x40000
    xnt = ""
    boost = 0
    nb3 = 8
    nbodd = 0
    local = True
    leak = None
    lsel = None
    tleak = None

WS_USED = 0x200000
STAMP_WS = 0x10000000
L_FLAG = 0
L_ML = 256
L_Q = 512
L_PART = 1536
L_RED = L_PART + 16384
LDS_BYTES = L_RED + 16 * 1280
S_Q, S_O, S_P = 0, 2048, 4096
NST = 16

def gen(cfg):
    L = []
    e = L.append
    lk = [int(x) for x in cfg.leak.split(",")] if cfg.leak else None
    tk = [int(x) for x in cfg.tleak.split(",")] if cfg.tleak else None
    def stamp(i):
        if cfg.stamps or (lk and i in lk[:2]) or (tk and (i in tk[:2] or i == 0)):
            e(f"s_memrealtime s[{64+2*i}:{65+2*i}]")
    def srd_c(d, size):
        e(f"s_mov_b32 s{d+2}, {size:#x}"); e(f"s_mov_b32 s{d+3}, 0x20000")
    def srd_p(d, lo):
        e(f"s_mov_b64 s[{d}:{d+1}], s[{lo}:{lo+1}]")
    def write_stamps():
        if not cfg.stamps: return
        e("s_waitcnt lgkmcnt(0) vmcnt(0)")
        e("s_sleep 64")
        srd_p(56, 30); srd_c(56, 0x20000000)
        e("s_mul_i32 s60, s2, 12"); e("s_add_u32 s60, s60, s3"); e(f"s_mul_i32 s60, s60, {NST*8}")
        e(f"s_add_u32 s60, s60, {STAMP_WS:#x}")
        e("s_mov_b64 exec, 1")
        e("v_mov_b32 v2, 0")
        for j in range(NST):
            e(f"v_mov_b32 v4, s{64+2*j}"); e(f"v_mov_b32 v5, s{65+2*j}")
            e(f"buffer_store_dwordx2 v[4:5], v2, s[56:59], s60 offen offset:{8*j}")
            e("s_waitcnt vmcnt(0)")
    def dpp(op, d, s0, s1, ctl, bank=0xf):
        if s1 is None: e(f"{op}_dpp v{d}, v{s0} {ctl} row_mask:0xf bank_mask:{bank:#x}")
        else: e(f"{op}_dpp v{d}, v{s0}, v{s1} {ctl} row_mask:0xf bank_mask:{bank:#x}")
    def lds_spin(name, off, cmp, val, vaddr, vtmp, cnt, sleep=1):
        e(f"L_{name}:")
        e(f"ds_read_b32 v{vtmp}, v{vaddr} offset:{off}")
        e("s_waitcnt lgkmcnt(0)")
        e(f"v_readfirstlane_b32 s11, v{vtmp}")
        e(f"s_sub_u32 s{cnt}, s{cnt}, 1")
        e(f"s_cbranch_scc1 L_{name}_done")
        e(f"s_cmp_{cmp}_u32 s11, {val}")
        if sleep:
            e(f"s_cbranch_scc1 L_{name}_done")
            e(f"s_sleep {sleep}")
            e(f"s_branch L_{name}")
        else:
            e(f"s_cbranch_scc0 L_{name}")
        e(f"L_{name}_done:")

    KB, VB, QB, DT, RB, CB, ACC = 8, 72, 136, 140, 144, 148, 152
    stamp(0)
    e("s_load_dwordx16 s[16:31], s[0:1], 0")
    e("v_lshrrev_b32 v1, 6, v0")
    e("s_cmp_ge_u32 s2, 256")
    e("s_cbranch_scc1 L_end")
    e("v_readfirstlane_b32 s3, v1")
    e("v_and_b32 v0, 63, v0")
    e("s_lshr_b32 s5, s2, 3")
    e("s_cmp_lt_u32 s3, 4")
    e("s_cbranch_scc1 L_helper")

    e("s_setprio 3")
    e("s_sub_u32 s6, s3, 4")
    e("s_lshl_b32 s10, s2, 19")
    e("s_lshl_b32 s11, s6, 14")
    e("s_add_u32 s10, s10, s11")
    e(f"s_add_u32 s10, s10, {1536*256}")
    e("s_lshl_b32 s11, s5, 12")
    e("s_xor_b32 s10, s10, s11")
    e("v_and_b32 v3, 3, v0")
    e("v_bfe_u32 v4, v0, 2, 2")
    e("v_lshrrev_b32 v5, 4, v0")
    e("v_lshlrev_b32 v5, 6, v5")
    e("v_lshl_add_u32 v1, v4, 8, v5")
    e("v_lshl_add_u32 v1, v3, 4, v1")
    e("v_lshlrev_b32 v2, 4, v0")
    srd_c(32, 0x8000000); srd_c(36, 0x8000000)
    e("v_mov_b32 v4, 0"); e("v_mov_b32 v5, 0"); e("v_mov_b32 v6, 0"); e("v_mov_b32 v7, 0")
    tcount = [0]
    def thr(n):
        if cfg.boost:
            tcount[0] += 1
            e(f"s_waitcnt vmcnt({n + cfg.boost})")
            e(f"s_cbranch_vccnz L_thr{tcount[0]}")
            e(f"s_waitcnt vmcnt({n})")
            e(f"L_thr{tcount[0]}:")
        else:
            e(f"s_waitcnt vmcnt({n})")
    if cfg.boost:
        e("s_and_b32 s11, s5, 7")
        e("s_cmp_eq_u32 s11, 3")
        e(f"s_cselect_b32 s12, {cfg.nb3}, 0")
        if cfg.nbodd:
            e("s_getreg_b32 s11, hwreg(HW_REG_XCC_ID, 0, 1)")
            e(f"s_mul_i32 s11, s11, {cfg.nbodd}")
            e("s_add_u32 s12, s12, s11")
        e("s_cmp_lt_u32 s6, s12")
        e("s_cselect_b64 vcc, -1, 0")
    e("s_waitcnt lgkmcnt(0)")
    srd_p(32, 18); srd_p(36, 20)
    first = 3 if cfg.nk_thr is None else cfg.nk_thr + 1
    n = 0
    for i in range(16):
        if i % 4 == 0 and i: e(f"s_xor_b32 s11, s10, {(i//4)*4096}")
        r = KB + 4*i
        e(f"buffer_load_dwordx4 v[{r}:{r+3}], v1, s[32:35], {'s11' if i >= 4 else 's10'} offen offset:{(i%4)*1024} nt")
        n += 1
        if n == first:
            e("s_setprio 0")
            e("ds_write_b128 v4, v[4:7]")
            e("s_waitcnt lgkmcnt(0)")
            e("s_barrier")
        if cfg.nk_thr is not None and n > cfg.nk_thr: thr(cfg.nk_thr)
        if n % 2 == 0 and n < 16: stamp(5 + n // 2)
    if cfg.stamps:
        for j in (13, 14, 15):
            e(f"s_mov_b64 s[{64+2*j}:{65+2*j}], 0")
    stamp(1)
    e(f"s_mov_b32 s12, {cfg.spin_max}")
    npre = min(16, cfg.nv_pre + cfg.nv_extra)
    def vload(i):
        if i % 4 == 0 or i == npre: e(f"s_xor_b32 s13, s10, {(i//4)*4096}")
        r = VB + 4*i
        e(f"buffer_load_dwordx4 v[{r}:{r+3}], v2, s[36:39], s13 offen offset:{(i%4)*1024} nt")
    for i in range(npre):
        vload(i)
        if cfg.nv_thr is not None and i < cfg.nv_pre: thr(cfg.nv_thr)
    stamp(2)
    e("s_mov_b32 s8, 0x05040100")
    e("s_mov_b32 s9, 0x07060302")
    e("s_mov_b32 s14, 0x3e0293ee")
    lds_spin("tq", L_FLAG+4, "eq", 1, 4, 6, 12)
    e(f"ds_read_b128 v[{QB}:{QB+3}], v2 offset:{L_Q}")
    e(f"s_waitcnt vmcnt({npre}) lgkmcnt(0)")
    stamp(3)
    D = lambda l: DT if l == 0 else KB + 4*(l-1)
    def red12(l):
        tb = (l >> 1) & 3; t2 = tb ^ 1
        dpp("v_add_f32", D(l)+tb, D(l)+(tb^2), D(l)+tb, "row_ror:8")
        dpp("v_add_f32", D(l)+t2, D(l)+(t2^2), D(l)+t2, "row_ror:8")
    def red3(l):
        tb = (l >> 1) & 3; t2 = tb ^ 1
        dpp("v_add_f32", RB + (l >> 3)*2 + (l & 1), D(l)+t2, D(l)+tb, f"row_ror:{4*((tb-t2)&3)}", 1 << tb)
    LAG = 4
    masks = ["s_mov_b32 s48, 0x000f000f", "s_mov_b32 s49, 0x000f000f", "s_mov_b32 s50, 0x00f000f0", "s_mov_b32 s51, 0x00f000f0",
             "s_mov_b32 s52, 0x0f000f00", "s_mov_b32 s53, 0x0f000f00", "s_mov_b32 s54, 0xf000f000", "s_mov_b32 s55, 0xf000f000"]
    for l in range(16 + LAG + 1):
        if l < 16:
            a = KB + 4*l
            e(f"v_mfma_f32_16x16x32_bf16 v[{D(l)}:{D(l)+3}], v[{a}:{a+3}], v[{QB}:{QB+3}], 0")
            if l < LAG: e(masks[2*l]); e(masks[2*l+1])
        if 0 <= l - LAG < 16: red12(l - LAG)
        if 0 <= l - LAG - 1 < 16: red3(l - LAG - 1)
        if l == 16 + LAG - 1: e("s_nop 0")
    e(f"v_max3_f32 v5, v{RB}, v{RB+1}, v{RB+2}")
    e(f"v_max_f32 v5, v5, v{RB+3}")
    e("s_lshl_b32 s11, s6, 3")
    e("v_lshl_add_u32 v3, v3, 6, s11")
    dpp("v_max_f32", 5, 5, 5, "row_ror:8")
    e("s_lshl_b32 s11, s6, 11")
    e("v_add_u32 v1, s11, v2")
    dpp("v_max_f32", 5, 5, 5, "row_ror:4")
    e("v_mov_b32 v6, v5")
    e("s_nop 1")
    e("v_permlane32_swap_b32 v5, v6")
    e("v_max_f32 v5, v5, v6")
    e("v_mov_b32 v6, v5")
    e("s_nop 1")
    e("v_permlane16_swap_b32 v5, v6")
    e("v_max_f32 v5, v5, v6")
    e("v_mul_f32 v6, s14, v5")
    for i in range(4):
        e(f"v_fma_f32 v{RB+i}, v{RB+i}, s14, -v6")
    for i in range(4):
        e(f"v_exp_f32 v{RB+i}, v{RB+i}")
    e("v_mov_b32 v150, 1")
    e(f"v_add_f32 v7, v{RB}, v{RB+1}")
    e(f"v_add_f32 v5, v{RB+2}, v{RB+3}")
    e("v_add_f32 v7, v7, v5")
    e(f"v_cvt_pk_bf16_f32 v{CB}, v{RB}, v{RB+1}")
    e(f"v_cvt_pk_bf16_f32 v{CB+1}, v{RB+2}, v{RB+3}")
    PM = KB
    cm = [f"v_cndmask_b32 v{PM+16*u+4*k+k}, 0, v{CB+u}, s[{48+2*k}:{49+2*k}]" for u in range(2) for k in range(4)]
    dpp("v_add_f32", 7, 7, 7, "row_ror:8")
    e(cm[0]); e(cm[1])
    dpp("v_add_f32", 7, 7, 7, "row_ror:4")
    e("v_mov_b32 v5, v7")
    e(cm[2]); e(cm[3])
    e("v_permlane32_swap_b32 v7, v5"); e("v_add_f32 v7, v7, v5"); e("v_mov_b32 v5, v7")
    e(cm[4]); e(cm[5])
    e("v_permlane16_swap_b32 v7, v5"); e("v_add_f32 v7, v7, v5")
    e(f"ds_write_b64 v3, v[6:7] offset:{L_ML}")
    e("s_mov_b64 exec, 1")
    e(f"ds_add_u32 v4, v150 offset:{L_FLAG+12}")
    e("s_mov_b64 exec, -1")
    for i in range(npre, 16):
        vload(i)
    e("s_mov_b64 exec, 1")
    e(f"ds_add_u32 v4, v150 offset:{L_FLAG+8}")
    e("s_mov_b64 exec, -1")
    e(cm[6]); e(cm[7])
    for u in range(2):
        for q4 in range(4):
            for k in range(4):
                if k == q4: continue
                dpp("v_mov_b32", PM+16*u+4*q4+k, PM+16*u+4*k+k, None, f"row_ror:{4*((q4-k)&3)}")
    stamp(4)
    for u in range(2):
        TB = KB + 32 if u == 0 else VB
        for ip in range(4):
            rem = 16 - (8*u + 2*ip + 2)
            e(f"s_waitcnt vmcnt({rem})")
            r0 = VB + 32*u + 8*ip; r1 = r0 + 4
            for w in range(4):
                e(f"v_perm_b32 v{TB+4*(2*w)+ip}, v{r1+w}, v{r0+w}, s8")
                e(f"v_perm_b32 v{TB+4*(2*w+1)+ip}, v{r1+w}, v{r0+w}, s9")
        for j in (0, 1, 4, 2, 5, 3, 6, 7):
            a = ACC + 4*(j >> 2)
            src = "0" if (u == 0 and (j & 3) == 0) else f"v[{a}:{a+3}]"
            b = PM + 16*u + 4*(j & 3)
            e(f"v_mfma_f32_16x16x32_bf16 v[{a}:{a+3}], v[{TB+4*j}:{TB+4*j+3}], v[{b}:{b+3}], {src}")
    e("s_nop 5")
    e(f"ds_write_b128 v1, v[{ACC}:{ACC+3}] offset:{L_PART}")
    e("s_nop 0")
    e(f"ds_write_b128 v1, v[{ACC+4}:{ACC+7}] offset:{L_PART+1024}")
    e("s_waitcnt lgkmcnt(0)")
    stamp(5)
    e("s_barrier")
    if cfg.stamps or tk:
        e("s_barrier")
    if tk:
        e("s_waitcnt lgkmcnt(0)")
        e(f"s_sub_u32 s11, s{64+2*tk[1]}, s{64+2*tk[0]}")
        if len(tk) > 3:
            e(f"s_min_u32 s11, s11, {tk[3]}")
            e(f"s_sub_u32 s11, {tk[3]}, s11")
        e(f"s_mul_i32 s11, s11, {tk[2]}")
        e("s_min_u32 s11, s11, 20000")
        e("s_add_u32 s11, s11, 2000")
        e("L_tleak:")
        e("s_sleep 4")
        e("s_memrealtime s[100:101]")
        e("s_waitcnt lgkmcnt(0)")
        e("s_sub_u32 s12, s100, s64")
        e("s_cmp_lt_u32 s12, s11")
        e("s_cbranch_scc1 L_tleak")
    write_stamps()
    e("s_endpgm")

    WQ, WO, TQ, TO, XB = 8, 40, 72, 104, 136
    e("L_helper:")
    e("s_and_b32 s4, s2, 7")
    e("s_lshl_b32 s62, s2, 13")
    e("s_lshr_b32 s6, s5, 3")
    e("s_and_b32 s7, s5, 7")
    e("s_and_b32 s59, s6, 1")
    e("s_lshr_b32 s58, s6, 1")
    e("v_lshrrev_b32 v1, 4, v0")
    e("v_and_b32 v3, 15, v0")
    e("v_lshlrev_b32 v7, 4, v1")
    e("v_lshl_add_u32 v5, v3, 10, v7")
    e("v_lshlrev_b32 v6, 16, v1")
    e("v_lshl_add_u32 v6, v3, 3, v6")
    e("s_lshl_b32 s63, s58, 14"); e("s_lshl_b32 s11, s59, 9"); e("s_add_u32 s63, s63, s11")
    e("s_lshl_b32 s10, s3, 7"); e("s_add_u32 s63, s63, s10"); e("s_add_u32 s10, s10, s11")
    e("s_lshl_b32 s12, s10, 12")
    e("s_lshl_b32 s11, s4, 10"); e("s_add_u32 s12, s12, s11")
    e("s_lshl_b32 s14, s7, 7"); e("s_add_u32 s12, s12, s14")
    srd_c(32, 0x8000); srd_c(36, 0x400000); srd_c(44, WS_USED); srd_c(48, 256)
    for r in range(144, 148): e(f"v_mov_b32 v{r}, -1")
    e("v_lshlrev_b32 v155, 4, v0")
    e("v_lshlrev_b32 v156, 4, v3")
    e("s_lshl_b32 s15, s58, 3"); e("s_add_u32 s15, s15, s4"); e("s_lshl_b32 s15, s15, 4")
    e("s_getreg_b32 s61, hwreg(HW_REG_XCC_ID, 0, 3)")
    e("s_mul_i32 s11, s61, s61"); e("s_lshl_b32 s11, s11, 8"); e("s_add_u32 s61, s61, s11"); e("s_add_u32 s61, s61, 0x100000")
    e("s_lshl_b32 s57, s61, 4")
    e(f"s_add_u32 s60, s62, {S_P}")
    e("s_cmp_lg_u32 s3, 0")
    e("s_waitcnt lgkmcnt(0)")
    srd_p(44, 30); srd_p(32, 16); srd_p(36, 22); srd_p(48, 28)
    e("s_cbranch_scc1 L_noclear")
    for k in range(3):
        e(f"buffer_store_dwordx4 v[144:147], v155, s[44:47], s62 offen offset:{1024*k} sc1")
    for k in range(4):
        e(f"buffer_store_dwordx4 v[144:147], v155, s[44:47], s60 offen offset:{1024*k} sc1")
    e("L_noclear:")
    seq = [("x", 0, 0), ("x", 1, 0)] + [("wq", r, i) for r in range(2) for i in range(8)]
    pos = {x: n for n, x in enumerate(seq)}
    for n, (k, r, i) in enumerate(seq):
        if k == "wq":
            d = WQ + 16*r + 2*i
            if r or i: e(f"s_add_u32 s11, s12, {(r*32+i)*8192}")
            e(f"buffer_load_dwordx2 v[{d}:{d+1}], v6, s[36:39], {'s11' if (r or i) else 's12'} offen nt")
        elif k == "x":
            e(f"buffer_load_dwordx4 v[{XB+4*r}:{XB+4*r+3}], v5, s[32:35], s63 offen offset:{64*r} {cfg.xnt}")
        if n == cfg.h_thr:
            e("s_setprio 3")
            e("s_barrier")
        if n >= cfg.h_thr and n < len(seq) - 1: e(f"s_waitcnt vmcnt({cfg.h_thr})")
        if n == cfg.h_thr:
            e("s_cmp_lg_u32 s3, 0")
            e("s_cbranch_scc1 L_noarr")
            e("s_atomic_add s61, s[28:29], s15 glc")
            e("L_noarr:")
        if n == cfg.chk_at:
            e("s_mov_b32 s97, 0")
            e("s_cmp_lg_u32 s3, 0")
            e("s_cbranch_scc1 L_nochk")
            e("s_waitcnt lgkmcnt(0)")
            e("s_atomic_add s97, s[28:29], s15 glc")
            e("L_nochk:")
    if cfg.stamps:
        for j in range(1, NST):
            e(f"s_mov_b64 s[{64+2*j}:{65+2*j}], 0")
    stamp(13)
    e("s_mov_b32 s8, 0x05040100")
    e("s_mov_b32 s9, 0x07060302")
    srd_p(52, 26); srd_c(52, 0x8000)
    srd_p(40, 24); srd_c(40, 0x400000)
    e("v_and_b32 v4, 1, v1"); e("v_lshlrev_b32 v4, 8, v4")
    e("v_lshrrev_b32 v2, 1, v1"); e("v_add_u32 v4, v4, v2")
    e("v_lshlrev_b32 v4, 10, v4"); e("v_lshl_add_u32 v4, v3, 3, v4")
    e("s_lshl_b32 s13, s4, 19"); e("s_add_u32 s13, s13, s14")
    e("s_lshl_b32 s11, s3, 15"); e("s_add_u32 s13, s13, s11")
    e("s_lshl_b32 s11, s59, 12"); e("s_add_u32 s13, s13, s11")
    e("s_lshl_b32 s12, s58, 7"); e("s_add_u32 s12, s12, s4"); e("s_lshl_b32 s12, s12, 13")
    e("s_add_u32 s10, s10, s12"); e(f"s_add_u32 s10, s10, {S_O}")
    e("v_lshl_add_u32 v5, v3, 16, v7")
    e("s_lshl_b32 s63, s3, 18"); e("s_add_u32 s63, s63, s12"); e("s_add_u32 s63, s63, s14")
    e("s_lshl_b32 s11, s59, 10"); e("s_add_u32 s63, s63, s11")
    e("v_lshlrev_b32 v162, 16, v1"); e("v_lshl_add_u32 v162, v3, 3, v162")
    e("s_lshl_b32 s11, s3, 8"); e("s_add_u32 s96, s62, s11"); e(f"s_add_u32 s96, s96, {S_O}")
    e("v_lshlrev_b32 v160, 2, v0")
    e("s_lshl_b32 s12, s6, 3"); e("s_add_u32 s12, s12, s4"); e("s_lshl_b32 s12, s12, 10"); e("s_add_u32 s12, s12, s14")
    e("s_lshl_b32 s14, s58, 7"); e("s_lshr_b32 s11, s3, 1"); e("s_lshl_b32 s11, s11, 6"); e("s_add_u32 s14, s14, s11")
    e("s_lshl_b32 s11, s7, 3"); e("s_add_u32 s14, s14, s11")
    e("s_and_b32 s11, s3, 1"); e("s_lshl_b32 s11, s11, 2"); e("s_add_u32 s14, s14, s11")
    e("s_lshl_b32 s14, s14, 13")
    e("s_lshl_b32 s11, s4, 1"); e("s_add_u32 s11, s11, s59"); e("s_lshl_b32 s11, s11, 8"); e("s_add_u32 s14, s14, s11")
    e(f"s_add_u32 s14, s14, {S_P}")
    e("v_lshlrev_b32 v161, 13, v1"); e("v_lshl_add_u32 v161, v3, 4, v161")
    e("s_mov_b32 s58, 0x11111111"); e("s_mov_b32 s59, 0x11111111")
    e("v_mov_b32 v152, 0"); e("v_mov_b32 v153, 1")
    e("v_mul_u32_u24 v149, 288, v1")
    e("v_lshl_add_u32 v149, v3, 4, v149")
    e("s_mul_i32 s11, s3, 5120")
    e("v_add_u32 v149, s11, v149")
    e("v_bfe_u32 v157, v0, 2, 2")
    e("v_mul_u32_u24 v150, 288, v157")
    e("v_add_u32 v150, v150, v7")
    e("v_and_b32 v151, 3, v0")
    e("v_lshl_add_u32 v150, v151, 2, v150")
    e("s_lshl_b32 s11, s3, 6"); e(f"s_add_u32 s11, s11, {L_RED}")
    e("v_add_u32 v150, s11, v150")

    def transpose(W, T, remf, thr, lo=0, hi=8):
        for r in range(2):
            for ip in range(4):
                if not (lo <= 4*r + ip < hi): continue
                rem = remf(r, 2*ip + 1)
                if rem <= thr: e(f"s_waitcnt vmcnt({rem})")
                r0 = W + 16*r + 4*ip; r1 = r0 + 2
                for w in range(2):
                    e(f"v_perm_b32 v{T+16*r+4*(2*w)+ip}, v{r1+w}, v{r0+w}, s8")
                    e(f"v_perm_b32 v{T+16*r+4*(2*w+1)+ip}, v{r1+w}, v{r0+w}, s9")
    AC = 8
    def proj_mfma(T):
        for r in range(2):
            for j in range(4):
                a = AC + 4*j
                src = "0" if r == 0 else f"v[{a}:{a+3}]"
                t = T + 16*r + 4*j
                e(f"v_mfma_f32_16x16x32_bf16 v[{a}:{a+3}], v[{t}:{t+3}], v[{XB+4*r}:{XB+4*r+3}], {src}")
        e("s_nop 4")
        for j in range(4):
            a = AC + 4*j
            e(f"ds_write_b128 v149, v[{a}:{a+3}] offset:{L_RED + 1280*j}")
    def reduce():
        for w in range(4):
            for jp in range(2):
                e(f"ds_read2st64_b32 v[{24+4*w+2*jp}:{25+4*w+2*jp}], v150 offset0:{5*(4*w+2*jp)} offset1:{5*(4*w+2*jp+1)}")
        e("s_waitcnt lgkmcnt(4)")
        e("v_pk_add_f32 v[24:25], v[24:25], v[28:29]")
        e("v_pk_add_f32 v[26:27], v[26:27], v[30:31]")
        e("s_waitcnt lgkmcnt(2)")
        e("v_pk_add_f32 v[24:25], v[24:25], v[32:33]")
        e("v_pk_add_f32 v[26:27], v[26:27], v[34:35]")
        e("s_waitcnt lgkmcnt(0)")
        e("v_pk_add_f32 v[24:25], v[24:25], v[36:37]")
        e("v_pk_add_f32 v[26:27], v[26:27], v[38:39]")
    def gather4(r):
        e("s_nop 1")
        dpp("v_mov_b32", r+1, r, None, "quad_perm:[1,1,1,1]")
        dpp("v_mov_b32", r+2, r, None, "quad_perm:[2,2,2,2]")
        dpp("v_mov_b32", r+3, r, None, "quad_perm:[3,3,3,3]")
    def gather2(r):
        e("s_nop 1")
        dpp("v_mov_b32", r+2, r, None, "quad_perm:[1,1,3,3]")
        dpp("v_mov_b32", r+3, r+1, None, "quad_perm:[1,1,3,3]")

    transpose(WQ, TQ, lambda r, i: len(seq) - 1 - pos[("wq", r, i)], cfg.h_thr)
    e("s_nop 0")
    stamp(1)
    proj_mfma(TQ)
    e(f"s_mov_b32 s61, {cfg.spin_max}")
    e("s_mov_b32 s56, 0x1000000")
    e("s_cmp_lg_u32 s3, 0")
    e("s_cbranch_scc1 L_gc_skip")
    e("L_gc:")
    e("s_waitcnt lgkmcnt(0)")
    e("s_cmp_ge_u32 s97, s56")
    e("s_cbranch_scc1 L_gc_done")
    e("s_sub_u32 s61, s61, 1")
    e("s_cbranch_scc1 L_gc_done")
    e("s_sleep 8")
    e("s_mov_b32 s97, 0")
    e("s_atomic_add s97, s[28:29], s15 glc")
    e("s_branch L_gc")
    e("L_gc_done:")
    e("v_mov_b32 v154, s97")
    e(f"ds_write_b32 v152, v154 offset:{L_FLAG+16}")
    e("L_gc_skip:")
    stamp(4)
    e(f"s_mov_b32 s15, {cfg.spin_max}")
    e("s_mov_b64 exec, 1")
    e(f"ds_add_u32 v152, v153 offset:{L_FLAG}")
    e("s_mov_b64 exec, -1")
    lds_spin("hs1", L_FLAG, "ge", 4, 152, 154, 15, sleep=0)
    e(f"ds_read_b32 v154, v152 offset:{L_FLAG+16}")
    reduce()
    e("v_readfirstlane_b32 s97, v154")
    e("v_cvt_pk_bf16_f32 v164, v24, v25")
    e("v_cvt_pk_bf16_f32 v165, v26, v27")
    e("v_min_u32 v164, -2, v164")
    e("v_min_u32 v165, -2, v165")
    gather2(164)
    e("s_mov_b32 exec_lo, 0x55555555"); e("s_mov_b32 exec_hi, 0x55555555")
    if cfg.local:
        e("s_cmp_eq_u32 s97, s57")
        e("s_cbranch_scc1 L_ql")
        e("buffer_store_dwordx4 v[164:167], v162, s[44:47], s63 offen sc1")
        e("s_branch L_qg")
        e("L_ql:")
        e("buffer_store_dwordx4 v[164:167], v162, s[44:47], s63 offen")
        e("L_qg:")
    else:
        e("buffer_store_dwordx4 v[164:167], v162, s[44:47], s63 offen sc1")
    e("s_mov_b64 exec, -1")
    stamp(2)
    e("s_cmp_lg_u32 s3, 0")
    e("s_cbranch_scc1 L_noq")
    e("v_lshl_add_u32 v157, v1, 2, v157")
    e("v_lshlrev_b32 v157, 4, v157")
    e("v_lshl_add_u32 v157, v151, 8, v157")
    e("L_qp:")
    e("buffer_load_dwordx4 v[8:11], v157, s[44:47], s62 offen sc1")
    e("buffer_load_dwordx4 v[12:15], v157, s[44:47], s62 offen offset:1024 sc1")
    e("s_waitcnt vmcnt(0)")
    e("v_max3_u32 v16, v8, v9, v10")
    e("v_max3_u32 v17, v11, v12, v13")
    e("v_max3_u32 v16, v16, v14, v15")
    e("v_max_u32 v16, v16, v17")
    e("v_cmp_eq_u32 vcc, -1, v16")
    e("s_sub_u32 s15, s15, 1")
    e("s_cbranch_scc1 L_qp_done")
    e("s_cbranch_vccnz L_qp")
    e("L_qp_done:")
    for k in range(4):
        e(f"v_lshlrev_b32 v16, 16, v{8+k}"); e(f"v_lshlrev_b32 v17, 16, v{12+k}")
        e(f"v_and_b32 v18, 0xffff0000, v{8+k}"); e(f"v_and_b32 v19, 0xffff0000, v{12+k}")
        e("v_add_f32 v16, v16, v17"); e("v_add_f32 v18, v18, v19")
        e(f"v_cvt_pk_bf16_f32 v{20+k}, v16, v18")
    e(f"ds_write_b128 v155, v[20:23] offset:{L_Q}")
    e(f"ds_write_b32 v152, v153 offset:{L_FLAG+4}")
    stamp(5)
    e("L_noq:")
    e("s_lshl_b32 s11, s3, 9")
    e("v_lshl_add_u32 v6, v0, 3, s11")
    e("v_bfe_u32 v7, v0, 1, 2")
    e("v_lshlrev_b32 v7, 6, v7")
    e("v_lshrrev_b32 v157, 5, v0")
    e("v_lshlrev_b32 v158, 3, v3")
    e("v_lshl_add_u32 v158, v157, 2, v158")
    e(f"s_mov_b32 s15, {cfg.spin_max}")
    def woload(n):
        r, i = n >> 3, n & 7
        d = WO + 16*r + 2*i
        rows = (i >> 2)*128 + (i & 3)*8
        e(f"s_add_u32 s11, s13, {rows*1024}")
        e(f"buffer_load_dwordx2 v[{d}:{d+1}], v4, s[40:43], s11 offen offset:{r*2048} nt")
    for n in range(cfg.nearly):
        woload(n)
        if n >= cfg.ho_thr: e(f"s_waitcnt vmcnt({cfg.ho_thr})")
    if cfg.nearly:
        e("s_waitcnt vmcnt(0)")
        transpose(WO, TO, lambda r, i: 99, 0, 0, cfg.nearly // 2)
    def weights():
        for k in range(4):
            e(f"ds_read_b128 v[{8+4*k}:{11+4*k}], v7 offset:{L_ML+16*k}")
        e("s_waitcnt lgkmcnt(0)")
        e("v_max3_f32 v24, v8, v10, v12")
        e("v_max3_f32 v25, v14, v16, v18")
        e("v_max3_f32 v24, v24, v20, v22")
        e("v_max_f32 v24, v24, v25")
        for w in range(8):
            e(f"v_sub_f32 v{8+2*w}, v{8+2*w}, v24")
        for w in range(8):
            e(f"v_exp_f32 v{8+2*w}, v{8+2*w}")
        e("v_mul_f32 v25, v8, v9")
        e("v_mul_f32 v26, v10, v11")
        for w in range(2, 8):
            e(f"v_fmac_f32 v{25+(w&1)}, v{8+2*w}, v{9+2*w}")
        e("v_add_f32 v25, v25, v26")
        e("v_rcp_f32 v25, v25")
        e("s_nop 0")
        for w in range(8):
            e(f"v_mul_f32 v{8+2*w}, v{8+2*w}, v25")
    lds_spin("w0", L_FLAG+12, "ge", 8, 152, 154, 15, sleep=2)
    weights()
    if cfg.wo_at:
        lds_spin("w1", L_FLAG+8, "ge", cfg.wo_at, 152, 154, 15, sleep=1)
    stamp(3)
    e("buffer_load_dword v159, v156, s[48:51], 0 offen sc1")
    for n in range(cfg.nearly, 16): woload(n)
    e("s_cmp_eq_u32 s97, s57")
    stamp(6)
    e("s_barrier")
    stamp(7)
    for w in range(8):
        e(f"ds_read_b64 v[{24+2*w}:{25+2*w}], v6 offset:{L_PART+2048*w}")
    e("s_waitcnt lgkmcnt(6)")
    e("v_pk_mul_f32 v[72:73], v[24:25], v[8:9] op_sel_hi:[1,0]")
    e("v_pk_mul_f32 v[74:75], v[26:27], v[10:11] op_sel_hi:[1,0]")
    for w in range(2, 8):
        if w % 2 == 0: e(f"s_waitcnt lgkmcnt({6-w})")
        d = 72 + 2*(w & 1)
        e(f"v_pk_fma_f32 v[{d}:{d+1}], v[{24+2*w}:{25+2*w}], v[{8+2*w}:{9+2*w}], v[{d}:{d+1}] op_sel_hi:[1,0,1]")
    e("v_pk_add_f32 v[72:73], v[72:73], v[74:75]")
    e("v_cvt_pk_bf16_f32 v72, v72, v73")
    e("v_min_u32 v72, -2, v72")
    gather4(72)
    e("s_mov_b64 exec, s[58:59]")
    if cfg.local:
        e("s_cbranch_scc1 L_ol")
        e("buffer_store_dwordx4 v[72:75], v160, s[44:47], s96 offen sc1")
        e("s_branch L_og")
        e("L_ol:")
        e("buffer_store_dwordx4 v[72:75], v160, s[44:47], s96 offen")
        e("L_og:")
    else:
        e("buffer_store_dwordx4 v[72:75], v160, s[44:47], s96 offen sc1")
    e("s_mov_b64 exec, -1")
    stamp(8)
    def opoll():
        e(f"buffer_load_dwordx4 v[{XB}:{XB+3}], v5, s[44:47], s10 offen sc1")
        e(f"buffer_load_dwordx4 v[{XB+4}:{XB+7}], v5, s[44:47], s10 offen offset:64 sc1")
    opoll()
    transpose(WO, TO, lambda r, i: 15 - (8*r + i) + 3, 99, cfg.nearly // 2, 8)
    if cfg.nearly == 16: e("s_waitcnt vmcnt(3)")
    e("L_ga:")
    e("v_cmp_gt_u32 vcc, s56, v159")
    stamp(14)
    e("s_cbranch_vccz L_opw")
    e("s_sub_u32 s15, s15, 1")
    e("s_cbranch_scc1 L_opw")
    e("s_sleep 16")
    e("buffer_load_dword v159, v156, s[48:51], 0 offen sc1")
    e("s_waitcnt vmcnt(0)")
    e("s_branch L_ga")
    e("L_op:")
    opoll()
    e("L_opw:")
    def mf(n):
        r, j = n >> 2, n & 3
        a = AC + 4*j
        src = "0" if r == 0 else f"v[{a}:{a+3}]"
        t = TO + 16*r + 4*j
        e(f"v_mfma_f32_16x16x32_bf16 v[{a}:{a+3}], v[{t}:{t+3}], v[{XB+4*r}:{XB+4*r+3}], {src}")
    e("s_waitcnt vmcnt(1)")
    if cfg.spec: mf(0)
    e(f"v_max3_u32 v40, v{XB}, v{XB+1}, v{XB+2}")
    if cfg.spec: mf(1)
    e("s_waitcnt vmcnt(0)")
    e(f"v_max3_u32 v41, v{XB+3}, v{XB+4}, v{XB+5}")
    e(f"v_max3_u32 v40, v40, v{XB+6}, v{XB+7}")
    if cfg.spec: mf(2)
    e("v_max_u32 v40, v40, v41")
    e("v_cmp_eq_u32 vcc, -1, v40")
    if cfg.spec: mf(3)
    e("s_cbranch_vccz L_op_done")
    e("s_sub_u32 s15, s15, 1")
    e("s_cbranch_scc0 L_op")
    e("L_op_done:")
    stamp(9)
    for n in range(4 if cfg.spec else 0, 8): mf(n)
    e("s_nop 4")
    for j in range(4):
        a = AC + 4*j
        e(f"ds_write_b128 v149, v[{a}:{a+3}] offset:{L_RED + 1280*j}")
    e("s_waitcnt lgkmcnt(0)")
    e("s_barrier")
    reduce()
    for k in range(4): e(f"v_min_u32 v{24+k}, -2, v{24+k}")
    e("buffer_store_dwordx4 v[24:27], v161, s[44:47], s14 offen sc1")
    stamp(10)
    e("s_cmp_lg_u32 s3, 0")
    e("s_cbranch_scc1 L_hend")
    e(f"s_mov_b32 s15, {cfg.spin_max}")
    e("L_fp:")
    for k in range(4):
        e(f"buffer_load_dwordx4 v[{8+4*k}:{11+4*k}], v155, s[44:47], s60 offen offset:{1024*k} sc1")
    e("s_waitcnt vmcnt(0)")
    e("v_max3_u32 v40, v8, v9, v10")
    e("v_max3_u32 v41, v11, v12, v13")
    e("v_max3_u32 v42, v14, v15, v16")
    e("v_max3_u32 v43, v17, v18, v19")
    e("v_max3_u32 v40, v40, v20, v21")
    e("v_max3_u32 v41, v41, v22, v23")
    e("v_max3_u32 v40, v40, v42, v43")
    e("v_max_u32 v40, v40, v41")
    e("v_cmp_eq_u32 vcc, -1, v40")
    e("s_cbranch_vccz L_fp_done")
    e("s_sub_u32 s15, s15, 1")
    e("s_cbranch_scc0 L_fp")
    e("L_fp_done:")
    stamp(11)
    e("v_pk_add_f32 v[8:9], v[8:9], v[12:13]")
    e("v_pk_add_f32 v[10:11], v[10:11], v[14:15]")
    e("v_pk_add_f32 v[16:17], v[16:17], v[20:21]")
    e("v_pk_add_f32 v[18:19], v[18:19], v[22:23]")
    e("v_pk_add_f32 v[8:9], v[8:9], v[16:17]")
    e("v_pk_add_f32 v[10:11], v[10:11], v[18:19]")
    e("s_nop 1")
    e("v_permlane32_swap_b32 v8, v10")
    e("v_permlane32_swap_b32 v9, v11")
    e("v_add_f32 v8, v8, v10")
    e("v_add_f32 v9, v9, v11")
    e("v_mov_b32 v10, v8"); e("v_mov_b32 v11, v9")
    e("s_nop 1")
    e("v_permlane16_swap_b32 v8, v10")
    e("v_permlane16_swap_b32 v9, v11")
    e("v_add_f32 v8, v8, v10")
    e("v_add_f32 v9, v9, v11")
    e("v_cvt_pk_bf16_f32 v8, v8, v9")
    e("s_mov_b32 exec_lo, 0x0000ffff"); e("s_mov_b32 exec_hi, 0x0000ffff")
    e("buffer_store_dword v8, v158, s[52:55], s12 offen")
    if cfg.stamps or lk:
        e("s_waitcnt vmcnt(0)")
    stamp(12)
    if lk:
        if cfg.lsel:
            reg, val = cfg.lsel.split(",")
            e(f"s_cmp_lg_u32 {reg}, {val}")
            e("s_cbranch_scc1 L_hend")
        e("s_memrealtime s[98:99]")
        e("s_waitcnt lgkmcnt(0)")
        e(f"s_sub_u32 s11, s{64+2*lk[1]}, s{64+2*lk[0]}")
        if len(lk) > 3:
            e(f"s_min_u32 s11, s11, {lk[3]}")
            e(f"s_sub_u32 s11, {lk[3]}, s11")
        e(f"s_mul_i32 s11, s11, {lk[2]}")
        e("s_min_u32 s11, s11, 20000")
        e("L_leak:")
        e("s_memrealtime s[100:101]")
        e("s_waitcnt lgkmcnt(0)")
        e("s_sub_u32 s12, s100, s98")
        e("s_cmp_lt_u32 s12, s11")
        e("s_cbranch_scc1 L_leak")
    e("L_hend:")
    write_stamps()
    e("L_end:")
    e("s_endpgm")

    body = "\n".join(x if x.endswith(":") else "    " + x for x in L)
    return (HDR + f"; @launch grid=(256,1,1) block=(768,1,1) lds={LDS_BYTES}\n"
        + f""".amdgcn_target "amdgcn-amd-amdhsa--gfx950"
.text
.globl {KN}_kernel
.p2align 8
.type {KN}_kernel,@function
{KN}_kernel:
""" + body + f"""
.section .rodata,"a"
.p2align 6
.amdhsa_kernel {KN}_kernel
  .amdhsa_next_free_vgpr 168
  .amdhsa_next_free_sgpr 102
  .amdhsa_accum_offset 168
  .amdhsa_group_segment_fixed_size 0
  .amdhsa_kernarg_size 64
  .amdhsa_user_sgpr_count 2
  .amdhsa_user_sgpr_kernarg_segment_ptr 1
  .amdhsa_system_sgpr_workgroup_id_x 1
.end_amdhsa_kernel
""")

if __name__ == "__main__":
    cfg = Cfg()
    out = sys.argv[1]
    for kv in sys.argv[2:]:
        k, v = kv.split("=")
        assert hasattr(cfg, k), k
        if v == "None": v = None
        elif v in ("True", "False"): v = (v == "True")
        else:
            try: v = int(v, 0)
            except ValueError: v = v.replace("+", " ")
        setattr(cfg, k, v)
    txt = gen(cfg)
    sys.path.insert(0, os.path.dirname(__file__))
    import hazcheck
    assert hazcheck.check(txt) == 0
    open(out, "w").write(txt)
```

```python
import sys, os
KN = "standalone__sliding_block_cached__sampling"

HDR = """; Kernarg layout for this problem (64 bytes, ptrs only, base s[0:1]):
;   offset   0: d_in[0] x  shape=(32, 1, 512) dtype=bfloat16 strides=(1024, 1024, 2) contiguous=True
;   offset   8: d_in[1] k_cache  shape=(32, 8, 2048, 128) dtype=bfloat16 strides=(4194304, 524288, 256, 2) contiguous=True
;   offset  16: d_in[2] v_cache  shape=(32, 8, 2048, 128) dtype=bfloat16 strides=(4194304, 524288, 256, 2) contiguous=True
;   offset  24: d_in[3] wq  shape=(512, 4096) dtype=bfloat16 strides=(8192, 2) contiguous=True
;   offset  32: d_in[4] wo  shape=(4096, 512) dtype=bfloat16 strides=(1024, 2) contiguous=True
"""

class Cfg:
    stamps = False
    nk_thr = 2
    nv_thr = 2
    nv_pre = 8
    nv_extra = 3
    h_thr = 5
    wo_at = 8
    nearly = 0
    ho_thr = 3
    chk_at = 17
    spec = True
    spin_max = 0x40000
    xnt = ""
    boost = 0
    nb3 = 8
    nbodd = 0
    local = True
    leak = None
    lsel = None
    tleak = None
    hleak = None
    hsub = 0

WS_USED = 0x200000
STAMP_WS = 0x10000000
L_FLAG = 0
L_ML = 256
L_Q = 512
L_PART = 1536
L_RED = L_PART + 16384
LDS_BYTES = L_RED + 16 * 1280
S_Q, S_O, S_P = 0, 2048, 4096
NST = 16

def gen(cfg):
    L = []
    e = L.append
    lk = [int(x) for x in cfg.leak.split(",")] if cfg.leak else None
    tk = [int(x) for x in cfg.tleak.split(",")] if cfg.tleak else None
    hk = [int(x) for x in cfg.hleak.split(",")] if cfg.hleak else None
    def stamp(i):
        if cfg.stamps or (lk and i in lk[:2]) or (tk and (i in tk[:2] or i == 0)) or (hk and (i in hk[:2] or i == 0)):
            e(f"s_memrealtime s[{64+2*i}:{65+2*i}]")
    def srd_c(d, size):
        e(f"s_mov_b32 s{d+2}, {size:#x}"); e(f"s_mov_b32 s{d+3}, 0x20000")
    def srd_p(d, lo):
        e(f"s_mov_b64 s[{d}:{d+1}], s[{lo}:{lo+1}]")
    def write_stamps():
        if not cfg.stamps: return
        e("s_waitcnt lgkmcnt(0) vmcnt(0)")
        e("s_sleep 64")
        srd_p(56, 30); srd_c(56, 0x20000000)
        e("s_mul_i32 s60, s2, 12"); e("s_add_u32 s60, s60, s3"); e(f"s_mul_i32 s60, s60, {NST*8}")
        e(f"s_add_u32 s60, s60, {STAMP_WS:#x}")
        e("s_mov_b64 exec, 1")
        e("v_mov_b32 v2, 0")
        for j in range(NST):
            e(f"v_mov_b32 v4, s{64+2*j}"); e(f"v_mov_b32 v5, s{65+2*j}")
            e(f"buffer_store_dwordx2 v[4:5], v2, s[56:59], s60 offen offset:{8*j}")
            e("s_waitcnt vmcnt(0)")
    def dpp(op, d, s0, s1, ctl, bank=0xf):
        if s1 is None: e(f"{op}_dpp v{d}, v{s0} {ctl} row_mask:0xf bank_mask:{bank:#x}")
        else: e(f"{op}_dpp v{d}, v{s0}, v{s1} {ctl} row_mask:0xf bank_mask:{bank:#x}")
    def lds_spin(name, off, cmp, val, vaddr, vtmp, cnt, sleep=1):
        e(f"L_{name}:")
        e(f"ds_read_b32 v{vtmp}, v{vaddr} offset:{off}")
        e("s_waitcnt lgkmcnt(0)")
        e(f"v_readfirstlane_b32 s11, v{vtmp}")
        e(f"s_sub_u32 s{cnt}, s{cnt}, 1")
        e(f"s_cbranch_scc1 L_{name}_done")
        e(f"s_cmp_{cmp}_u32 s11, {val}")
        if sleep:
            e(f"s_cbranch_scc1 L_{name}_done")
            e(f"s_sleep {sleep}")
            e(f"s_branch L_{name}")
        else:
            e(f"s_cbranch_scc0 L_{name}")
        e(f"L_{name}_done:")

    KB, VB, QB, DT, RB, CB, ACC = 8, 72, 136, 140, 144, 148, 152
    stamp(0)
    e("s_load_dwordx16 s[16:31], s[0:1], 0")
    e("v_lshrrev_b32 v1, 6, v0")
    e("s_cmp_ge_u32 s2, 256")
    e("s_cbranch_scc1 L_end")
    e("v_readfirstlane_b32 s3, v1")
    e("v_and_b32 v0, 63, v0")
    e("s_lshr_b32 s5, s2, 3")
    e("s_cmp_lt_u32 s3, 4")
    e("s_cbranch_scc1 L_helper")

    e("s_setprio 3")
    e("s_sub_u32 s6, s3, 4")
    e("s_lshl_b32 s10, s2, 19")
    e("s_lshl_b32 s11, s6, 14")
    e("s_add_u32 s10, s10, s11")
    e(f"s_add_u32 s10, s10, {1536*256}")
    e("s_lshl_b32 s11, s5, 12")
    e("s_xor_b32 s10, s10, s11")
    e("v_and_b32 v3, 3, v0")
    e("v_bfe_u32 v4, v0, 2, 2")
    e("v_lshrrev_b32 v5, 4, v0")
    e("v_lshlrev_b32 v5, 6, v5")
    e("v_lshl_add_u32 v1, v4, 8, v5")
    e("v_lshl_add_u32 v1, v3, 4, v1")
    e("v_lshlrev_b32 v2, 4, v0")
    srd_c(32, 0x8000000); srd_c(36, 0x8000000)
    e("v_mov_b32 v4, 0"); e("v_mov_b32 v5, 0"); e("v_mov_b32 v6, 0"); e("v_mov_b32 v7, 0")
    tcount = [0]
    def thr(n):
        if cfg.boost:
            tcount[0] += 1
            e(f"s_waitcnt vmcnt({n + cfg.boost})")
            e(f"s_cbranch_vccnz L_thr{tcount[0]}")
            e(f"s_waitcnt vmcnt({n})")
            e(f"L_thr{tcount[0]}:")
        else:
            e(f"s_waitcnt vmcnt({n})")
    if cfg.boost:
        e("s_and_b32 s11, s5, 7")
        e("s_cmp_eq_u32 s11, 3")
        e(f"s_cselect_b32 s12, {cfg.nb3}, 0")
        if cfg.nbodd:
            e("s_getreg_b32 s11, hwreg(HW_REG_XCC_ID, 0, 1)")
            e(f"s_mul_i32 s11, s11, {cfg.nbodd}")
            e("s_add_u32 s12, s12, s11")
        e("s_cmp_lt_u32 s6, s12")
        e("s_cselect_b64 vcc, -1, 0")
    e("s_waitcnt lgkmcnt(0)")
    srd_p(32, 18); srd_p(36, 20)
    first = 3 if cfg.nk_thr is None else cfg.nk_thr + 1
    n = 0
    for i in range(16):
        if i % 4 == 0 and i: e(f"s_xor_b32 s11, s10, {(i//4)*4096}")
        r = KB + 4*i
        e(f"buffer_load_dwordx4 v[{r}:{r+3}], v1, s[32:35], {'s11' if i >= 4 else 's10'} offen offset:{(i%4)*1024} nt")
        n += 1
        if n == first:
            e("s_setprio 0")
            e("ds_write_b128 v4, v[4:7]")
            e("s_waitcnt lgkmcnt(0)")
            e("s_barrier")
        if cfg.nk_thr is not None and n > cfg.nk_thr: thr(cfg.nk_thr)
        if n % 2 == 0 and n < 16: stamp(5 + n // 2)
    if cfg.stamps:
        for j in (13, 14, 15):
            e(f"s_mov_b64 s[{64+2*j}:{65+2*j}], 0")
    stamp(1)
    e(f"s_mov_b32 s12, {cfg.spin_max}")
    npre = min(16, cfg.nv_pre + cfg.nv_extra)
    def vload(i):
        if i % 4 == 0 or i == npre: e(f"s_xor_b32 s13, s10, {(i//4)*4096}")
        r = VB + 4*i
        e(f"buffer_load_dwordx4 v[{r}:{r+3}], v2, s[36:39], s13 offen offset:{(i%4)*1024} nt")
    for i in range(npre):
        vload(i)
        if cfg.nv_thr is not None and i < cfg.nv_pre: thr(cfg.nv_thr)
    stamp(2)
    e("s_mov_b32 s8, 0x05040100")
    e("s_mov_b32 s9, 0x07060302")
    e("s_mov_b32 s14, 0x3e0293ee")
    lds_spin("tq", L_FLAG+4, "eq", 1, 4, 6, 12)
    e(f"ds_read_b128 v[{QB}:{QB+3}], v2 offset:{L_Q}")
    e(f"s_waitcnt vmcnt({npre}) lgkmcnt(0)")
    stamp(3)
    D = lambda l: DT if l == 0 else KB + 4*(l-1)
    def red12(l):
        tb = (l >> 1) & 3; t2 = tb ^ 1
        dpp("v_add_f32", D(l)+tb, D(l)+(tb^2), D(l)+tb, "row_ror:8")
        dpp("v_add_f32", D(l)+t2, D(l)+(t2^2), D(l)+t2, "row_ror:8")
    def red3(l):
        tb = (l >> 1) & 3; t2 = tb ^ 1
        dpp("v_add_f32", RB + (l >> 3)*2 + (l & 1), D(l)+t2, D(l)+tb, f"row_ror:{4*((tb-t2)&3)}", 1 << tb)
    LAG = 4
    masks = ["s_mov_b32 s48, 0x000f000f", "s_mov_b32 s49, 0x000f000f", "s_mov_b32 s50, 0x00f000f0", "s_mov_b32 s51, 0x00f000f0",
             "s_mov_b32 s52, 0x0f000f00", "s_mov_b32 s53, 0x0f000f00", "s_mov_b32 s54, 0xf000f000", "s_mov_b32 s55, 0xf000f000"]
    for l in range(16 + LAG + 1):
        if l < 16:
            a = KB + 4*l
            e(f"v_mfma_f32_16x16x32_bf16 v[{D(l)}:{D(l)+3}], v[{a}:{a+3}], v[{QB}:{QB+3}], 0")
            if l < LAG: e(masks[2*l]); e(masks[2*l+1])
        if 0 <= l - LAG < 16: red12(l - LAG)
        if 0 <= l - LAG - 1 < 16: red3(l - LAG - 1)
        if l == 16 + LAG - 1: e("s_nop 0")
    e(f"v_max3_f32 v5, v{RB}, v{RB+1}, v{RB+2}")
    e(f"v_max_f32 v5, v5, v{RB+3}")
    e("s_lshl_b32 s11, s6, 3")
    e("v_lshl_add_u32 v3, v3, 6, s11")
    dpp("v_max_f32", 5, 5, 5, "row_ror:8")
    e("s_lshl_b32 s11, s6, 11")
    e("v_add_u32 v1, s11, v2")
    dpp("v_max_f32", 5, 5, 5, "row_ror:4")
    e("v_mov_b32 v6, v5")
    e("s_nop 1")
    e("v_permlane32_swap_b32 v5, v6")
    e("v_max_f32 v5, v5, v6")
    e("v_mov_b32 v6, v5")
    e("s_nop 1")
    e("v_permlane16_swap_b32 v5, v6")
    e("v_max_f32 v5, v5, v6")
    e("v_mul_f32 v6, s14, v5")
    for i in range(4):
        e(f"v_fma_f32 v{RB+i}, v{RB+i}, s14, -v6")
    for i in range(4):
        e(f"v_exp_f32 v{RB+i}, v{RB+i}")
    e("v_mov_b32 v150, 1")
    e(f"v_add_f32 v7, v{RB}, v{RB+1}")
    e(f"v_add_f32 v5, v{RB+2}, v{RB+3}")
    e("v_add_f32 v7, v7, v5")
    e(f"v_cvt_pk_bf16_f32 v{CB}, v{RB}, v{RB+1}")
    e(f"v_cvt_pk_bf16_f32 v{CB+1}, v{RB+2}, v{RB+3}")
    PM = KB
    cm = [f"v_cndmask_b32 v{PM+16*u+4*k+k}, 0, v{CB+u}, s[{48+2*k}:{49+2*k}]" for u in range(2) for k in range(4)]
    dpp("v_add_f32", 7, 7, 7, "row_ror:8")
    e(cm[0]); e(cm[1])
    dpp("v_add_f32", 7, 7, 7, "row_ror:4")
    e("v_mov_b32 v5, v7")
    e(cm[2]); e(cm[3])
    e("v_permlane32_swap_b32 v7, v5"); e("v_add_f32 v7, v7, v5"); e("v_mov_b32 v5, v7")
    e(cm[4]); e(cm[5])
    e("v_permlane16_swap_b32 v7, v5"); e("v_add_f32 v7, v7, v5")
    e(f"ds_write_b64 v3, v[6:7] offset:{L_ML}")
    e("s_mov_b64 exec, 1")
    e(f"ds_add_u32 v4, v150 offset:{L_FLAG+12}")
    e("s_mov_b64 exec, -1")
    for i in range(npre, 16):
        vload(i)
    e("s_mov_b64 exec, 1")
    e(f"ds_add_u32 v4, v150 offset:{L_FLAG+8}")
    e("s_mov_b64 exec, -1")
    e(cm[6]); e(cm[7])
    for u in range(2):
        for q4 in range(4):
            for k in range(4):
                if k == q4: continue
                dpp("v_mov_b32", PM+16*u+4*q4+k, PM+16*u+4*k+k, None, f"row_ror:{4*((q4-k)&3)}")
    stamp(4)
    for u in range(2):
        TB = KB + 32 if u == 0 else VB
        for ip in range(4):
            rem = 16 - (8*u + 2*ip + 2)
            e(f"s_waitcnt vmcnt({rem})")
            r0 = VB + 32*u + 8*ip; r1 = r0 + 4
            for w in range(4):
                e(f"v_perm_b32 v{TB+4*(2*w)+ip}, v{r1+w}, v{r0+w}, s8")
                e(f"v_perm_b32 v{TB+4*(2*w+1)+ip}, v{r1+w}, v{r0+w}, s9")
        for j in (0, 1, 4, 2, 5, 3, 6, 7):
            a = ACC + 4*(j >> 2)
            src = "0" if (u == 0 and (j & 3) == 0) else f"v[{a}:{a+3}]"
            b = PM + 16*u + 4*(j & 3)
            e(f"v_mfma_f32_16x16x32_bf16 v[{a}:{a+3}], v[{TB+4*j}:{TB+4*j+3}], v[{b}:{b+3}], {src}")
    e("s_nop 5")
    e(f"ds_write_b128 v1, v[{ACC}:{ACC+3}] offset:{L_PART}")
    e("s_nop 0")
    e(f"ds_write_b128 v1, v[{ACC+4}:{ACC+7}] offset:{L_PART+1024}")
    e("s_waitcnt lgkmcnt(0)")
    stamp(5)
    e("s_barrier")
    if cfg.stamps or tk:
        e("s_barrier")
    if tk:
        e("s_waitcnt lgkmcnt(0)")
        e(f"s_sub_u32 s11, s{64+2*tk[1]}, s{64+2*tk[0]}")
        if len(tk) > 3:
            e(f"s_min_u32 s11, s11, {tk[3]}")
            e(f"s_sub_u32 s11, {tk[3]}, s11")
        e(f"s_mul_i32 s11, s11, {tk[2]}")
        e("s_min_u32 s11, s11, 20000")
        e("s_add_u32 s11, s11, 2000")
        e("L_tleak:")
        e("s_sleep 4")
        e("s_memrealtime s[100:101]")
        e("s_waitcnt lgkmcnt(0)")
        e("s_sub_u32 s12, s100, s64")
        e("s_cmp_lt_u32 s12, s11")
        e("s_cbranch_scc1 L_tleak")
    write_stamps()
    e("s_endpgm")

    WQ, WO, TQ, TO, XB = 8, 40, 72, 104, 136
    e("L_helper:")
    e("s_and_b32 s4, s2, 7")
    e("s_lshl_b32 s62, s2, 13")
    e("s_lshr_b32 s6, s5, 3")
    e("s_and_b32 s7, s5, 7")
    e("s_and_b32 s59, s6, 1")
    e("s_lshr_b32 s58, s6, 1")
    e("v_lshrrev_b32 v1, 4, v0")
    e("v_and_b32 v3, 15, v0")
    e("v_lshlrev_b32 v7, 4, v1")
    e("v_lshl_add_u32 v5, v3, 10, v7")
    e("v_lshlrev_b32 v6, 16, v1")
    e("v_lshl_add_u32 v6, v3, 3, v6")
    e("s_lshl_b32 s63, s58, 14"); e("s_lshl_b32 s11, s59, 9"); e("s_add_u32 s63, s63, s11")
    e("s_lshl_b32 s10, s3, 7"); e("s_add_u32 s63, s63, s10"); e("s_add_u32 s10, s10, s11")
    e("s_lshl_b32 s12, s10, 12")
    e("s_lshl_b32 s11, s4, 10"); e("s_add_u32 s12, s12, s11")
    e("s_lshl_b32 s14, s7, 7"); e("s_add_u32 s12, s12, s14")
    srd_c(32, 0x8000); srd_c(36, 0x400000); srd_c(44, WS_USED); srd_c(48, 256)
    for r in range(144, 148): e(f"v_mov_b32 v{r}, -1")
    e("v_lshlrev_b32 v155, 4, v0")
    e("v_lshlrev_b32 v156, 4, v3")
    e("s_lshl_b32 s15, s58, 3"); e("s_add_u32 s15, s15, s4"); e("s_lshl_b32 s15, s15, 4")
    e("s_getreg_b32 s61, hwreg(HW_REG_XCC_ID, 0, 3)")
    e("s_mul_i32 s11, s61, s61"); e("s_lshl_b32 s11, s11, 8"); e("s_add_u32 s61, s61, s11"); e("s_add_u32 s61, s61, 0x100000")
    e("s_lshl_b32 s57, s61, 4")
    e(f"s_add_u32 s60, s62, {S_P}")
    e("s_cmp_lg_u32 s3, 0")
    e("s_waitcnt lgkmcnt(0)")
    srd_p(44, 30); srd_p(32, 16); srd_p(36, 22); srd_p(48, 28)
    e("s_cbranch_scc1 L_noclear")
    for k in range(3):
        e(f"buffer_store_dwordx4 v[144:147], v155, s[44:47], s62 offen offset:{1024*k} sc1")
    for k in range(4):
        e(f"buffer_store_dwordx4 v[144:147], v155, s[44:47], s60 offen offset:{1024*k} sc1")
    e("L_noclear:")
    seq = [("x", 0, 0), ("x", 1, 0)] + [("wq", r, i) for r in range(2) for i in range(8)]
    pos = {x: n for n, x in enumerate(seq)}
    for n, (k, r, i) in enumerate(seq):
        if k == "wq":
            d = WQ + 16*r + 2*i
            if r or i: e(f"s_add_u32 s11, s12, {(r*32+i)*8192}")
            e(f"buffer_load_dwordx2 v[{d}:{d+1}], v6, s[36:39], {'s11' if (r or i) else 's12'} offen nt")
        elif k == "x":
            e(f"buffer_load_dwordx4 v[{XB+4*r}:{XB+4*r+3}], v5, s[32:35], s63 offen offset:{64*r} {cfg.xnt}")
        if n == cfg.h_thr:
            e("s_setprio 3")
            e("s_barrier")
        if n >= cfg.h_thr and n < len(seq) - 1: e(f"s_waitcnt vmcnt({cfg.h_thr})")
        if n == cfg.h_thr:
            e("s_cmp_lg_u32 s3, 0")
            e("s_cbranch_scc1 L_noarr")
            e("s_atomic_add s61, s[28:29], s15 glc")
            e("L_noarr:")
        if n == cfg.chk_at:
            e("s_mov_b32 s97, 0")
            e("s_cmp_lg_u32 s3, 0")
            e("s_cbranch_scc1 L_nochk")
            e("s_waitcnt lgkmcnt(0)")
            e("s_atomic_add s97, s[28:29], s15 glc")
            e("L_nochk:")
    if cfg.stamps:
        for j in range(1, NST):
            e(f"s_mov_b64 s[{64+2*j}:{65+2*j}], 0")
    stamp(13)
    e("s_mov_b32 s8, 0x05040100")
    e("s_mov_b32 s9, 0x07060302")
    srd_p(52, 26); srd_c(52, 0x8000)
    srd_p(40, 24); srd_c(40, 0x400000)
    e("v_and_b32 v4, 1, v1"); e("v_lshlrev_b32 v4, 8, v4")
    e("v_lshrrev_b32 v2, 1, v1"); e("v_add_u32 v4, v4, v2")
    e("v_lshlrev_b32 v4, 10, v4"); e("v_lshl_add_u32 v4, v3, 3, v4")
    e("s_lshl_b32 s13, s4, 19"); e("s_add_u32 s13, s13, s14")
    e("s_lshl_b32 s11, s3, 15"); e("s_add_u32 s13, s13, s11")
    e("s_lshl_b32 s11, s59, 12"); e("s_add_u32 s13, s13, s11")
    e("s_lshl_b32 s12, s58, 7"); e("s_add_u32 s12, s12, s4"); e("s_lshl_b32 s12, s12, 13")
    e("s_add_u32 s10, s10, s12"); e(f"s_add_u32 s10, s10, {S_O}")
    e("v_lshl_add_u32 v5, v3, 16, v7")
    e("s_lshl_b32 s63, s3, 18"); e("s_add_u32 s63, s63, s12"); e("s_add_u32 s63, s63, s14")
    e("s_lshl_b32 s11, s59, 10"); e("s_add_u32 s63, s63, s11")
    e("v_lshlrev_b32 v162, 16, v1"); e("v_lshl_add_u32 v162, v3, 3, v162")
    e("s_lshl_b32 s11, s3, 8"); e("s_add_u32 s96, s62, s11"); e(f"s_add_u32 s96, s96, {S_O}")
    e("v_lshlrev_b32 v160, 2, v0")
    e("s_lshl_b32 s12, s6, 3"); e("s_add_u32 s12, s12, s4"); e("s_lshl_b32 s12, s12, 10"); e("s_add_u32 s12, s12, s14")
    e("s_lshl_b32 s14, s58, 7"); e("s_lshr_b32 s11, s3, 1"); e("s_lshl_b32 s11, s11, 6"); e("s_add_u32 s14, s14, s11")
    e("s_lshl_b32 s11, s7, 3"); e("s_add_u32 s14, s14, s11")
    e("s_and_b32 s11, s3, 1"); e("s_lshl_b32 s11, s11, 2"); e("s_add_u32 s14, s14, s11")
    e("s_lshl_b32 s14, s14, 13")
    e("s_lshl_b32 s11, s4, 1"); e("s_add_u32 s11, s11, s59"); e("s_lshl_b32 s11, s11, 8"); e("s_add_u32 s14, s14, s11")
    e(f"s_add_u32 s14, s14, {S_P}")
    e("v_lshlrev_b32 v161, 13, v1"); e("v_lshl_add_u32 v161, v3, 4, v161")
    e("s_mov_b32 s58, 0x11111111"); e("s_mov_b32 s59, 0x11111111")
    e("v_mov_b32 v152, 0"); e("v_mov_b32 v153, 1")
    e("v_mul_u32_u24 v149, 288, v1")
    e("v_lshl_add_u32 v149, v3, 4, v149")
    e("s_mul_i32 s11, s3, 5120")
    e("v_add_u32 v149, s11, v149")
    e("v_bfe_u32 v157, v0, 2, 2")
    e("v_mul_u32_u24 v150, 288, v157")
    e("v_add_u32 v150, v150, v7")
    e("v_and_b32 v151, 3, v0")
    e("v_lshl_add_u32 v150, v151, 2, v150")
    e("s_lshl_b32 s11, s3, 6"); e(f"s_add_u32 s11, s11, {L_RED}")
    e("v_add_u32 v150, s11, v150")

    def transpose(W, T, remf, thr, lo=0, hi=8):
        for r in range(2):
            for ip in range(4):
                if not (lo <= 4*r + ip < hi): continue
                rem = remf(r, 2*ip + 1)
                if rem <= thr: e(f"s_waitcnt vmcnt({rem})")
                r0 = W + 16*r + 4*ip; r1 = r0 + 2
                for w in range(2):
                    e(f"v_perm_b32 v{T+16*r+4*(2*w)+ip}, v{r1+w}, v{r0+w}, s8")
                    e(f"v_perm_b32 v{T+16*r+4*(2*w+1)+ip}, v{r1+w}, v{r0+w}, s9")
    AC = 8
    def proj_mfma(T):
        for r in range(2):
            for j in range(4):
                a = AC + 4*j
                src = "0" if r == 0 else f"v[{a}:{a+3}]"
                t = T + 16*r + 4*j
                e(f"v_mfma_f32_16x16x32_bf16 v[{a}:{a+3}], v[{t}:{t+3}], v[{XB+4*r}:{XB+4*r+3}], {src}")
        e("s_nop 4")
        for j in range(4):
            a = AC + 4*j
            e(f"ds_write_b128 v149, v[{a}:{a+3}] offset:{L_RED + 1280*j}")
    def reduce():
        for w in range(4):
            for jp in range(2):
                e(f"ds_read2st64_b32 v[{24+4*w+2*jp}:{25+4*w+2*jp}], v150 offset0:{5*(4*w+2*jp)} offset1:{5*(4*w+2*jp+1)}")
        e("s_waitcnt lgkmcnt(4)")
        e("v_pk_add_f32 v[24:25], v[24:25], v[28:29]")
        e("v_pk_add_f32 v[26:27], v[26:27], v[30:31]")
        e("s_waitcnt lgkmcnt(2)")
        e("v_pk_add_f32 v[24:25], v[24:25], v[32:33]")
        e("v_pk_add_f32 v[26:27], v[26:27], v[34:35]")
        e("s_waitcnt lgkmcnt(0)")
        e("v_pk_add_f32 v[24:25], v[24:25], v[36:37]")
        e("v_pk_add_f32 v[26:27], v[26:27], v[38:39]")
    def gather4(r):
        e("s_nop 1")
        dpp("v_mov_b32", r+1, r, None, "quad_perm:[1,1,1,1]")
        dpp("v_mov_b32", r+2, r, None, "quad_perm:[2,2,2,2]")
        dpp("v_mov_b32", r+3, r, None, "quad_perm:[3,3,3,3]")
    def gather2(r):
        e("s_nop 1")
        dpp("v_mov_b32", r+2, r, None, "quad_perm:[1,1,3,3]")
        dpp("v_mov_b32", r+3, r+1, None, "quad_perm:[1,1,3,3]")

    transpose(WQ, TQ, lambda r, i: len(seq) - 1 - pos[("wq", r, i)], cfg.h_thr)
    e("s_nop 0")
    stamp(1)
    proj_mfma(TQ)
    e(f"s_mov_b32 s61, {cfg.spin_max}")
    e("s_mov_b32 s56, 0x1000000")
    e("s_cmp_lg_u32 s3, 0")
    e("s_cbranch_scc1 L_gc_skip")
    e("L_gc:")
    e("s_waitcnt lgkmcnt(0)")
    e("s_cmp_ge_u32 s97, s56")
    e("s_cbranch_scc1 L_gc_done")
    e("s_sub_u32 s61, s61, 1")
    e("s_cbranch_scc1 L_gc_done")
    e("s_sleep 8")
    e("s_mov_b32 s97, 0")
    e("s_atomic_add s97, s[28:29], s15 glc")
    e("s_branch L_gc")
    e("L_gc_done:")
    e("v_mov_b32 v154, s97")
    e(f"ds_write_b32 v152, v154 offset:{L_FLAG+16}")
    e("L_gc_skip:")
    stamp(4)
    e(f"s_mov_b32 s15, {cfg.spin_max}")
    e("s_mov_b64 exec, 1")
    e(f"ds_add_u32 v152, v153 offset:{L_FLAG}")
    e("s_mov_b64 exec, -1")
    lds_spin("hs1", L_FLAG, "ge", 4, 152, 154, 15, sleep=0)
    e(f"ds_read_b32 v154, v152 offset:{L_FLAG+16}")
    reduce()
    e("v_readfirstlane_b32 s97, v154")
    e("v_cvt_pk_bf16_f32 v164, v24, v25")
    e("v_cvt_pk_bf16_f32 v165, v26, v27")
    e("v_min_u32 v164, -2, v164")
    e("v_min_u32 v165, -2, v165")
    gather2(164)
    e("s_mov_b32 exec_lo, 0x55555555"); e("s_mov_b32 exec_hi, 0x55555555")
    if cfg.local:
        e("s_cmp_eq_u32 s97, s57")
        e("s_cbranch_scc1 L_ql")
        e("buffer_store_dwordx4 v[164:167], v162, s[44:47], s63 offen sc1")
        e("s_branch L_qg")
        e("L_ql:")
        e("buffer_store_dwordx4 v[164:167], v162, s[44:47], s63 offen")
        e("L_qg:")
    else:
        e("buffer_store_dwordx4 v[164:167], v162, s[44:47], s63 offen sc1")
    e("s_mov_b64 exec, -1")
    stamp(2)
    e("s_cmp_lg_u32 s3, 0")
    e("s_cbranch_scc1 L_noq")
    e("v_lshl_add_u32 v157, v1, 2, v157")
    e("v_lshlrev_b32 v157, 4, v157")
    e("v_lshl_add_u32 v157, v151, 8, v157")
    e("L_qp:")
    e("buffer_load_dwordx4 v[8:11], v157, s[44:47], s62 offen sc1")
    e("buffer_load_dwordx4 v[12:15], v157, s[44:47], s62 offen offset:1024 sc1")
    e("s_waitcnt vmcnt(0)")
    e("v_max3_u32 v16, v8, v9, v10")
    e("v_max3_u32 v17, v11, v12, v13")
    e("v_max3_u32 v16, v16, v14, v15")
    e("v_max_u32 v16, v16, v17")
    e("v_cmp_eq_u32 vcc, -1, v16")
    e("s_sub_u32 s15, s15, 1")
    e("s_cbranch_scc1 L_qp_done")
    e("s_cbranch_vccnz L_qp")
    e("L_qp_done:")
    for k in range(4):
        e(f"v_lshlrev_b32 v16, 16, v{8+k}"); e(f"v_lshlrev_b32 v17, 16, v{12+k}")
        e(f"v_and_b32 v18, 0xffff0000, v{8+k}"); e(f"v_and_b32 v19, 0xffff0000, v{12+k}")
        e("v_add_f32 v16, v16, v17"); e("v_add_f32 v18, v18, v19")
        e(f"v_cvt_pk_bf16_f32 v{20+k}, v16, v18")
    e(f"ds_write_b128 v155, v[20:23] offset:{L_Q}")
    e(f"ds_write_b32 v152, v153 offset:{L_FLAG+4}")
    stamp(5)
    e("L_noq:")
    e("s_lshl_b32 s11, s3, 9")
    e("v_lshl_add_u32 v6, v0, 3, s11")
    e("v_bfe_u32 v7, v0, 1, 2")
    e("v_lshlrev_b32 v7, 6, v7")
    e("v_lshrrev_b32 v157, 5, v0")
    e("v_lshlrev_b32 v158, 3, v3")
    e("v_lshl_add_u32 v158, v157, 2, v158")
    e(f"s_mov_b32 s15, {cfg.spin_max}")
    def woload(n):
        r, i = n >> 3, n & 7
        d = WO + 16*r + 2*i
        rows = (i >> 2)*128 + (i & 3)*8
        e(f"s_add_u32 s11, s13, {rows*1024}")
        e(f"buffer_load_dwordx2 v[{d}:{d+1}], v4, s[40:43], s11 offen offset:{r*2048} nt")
    for n in range(cfg.nearly):
        woload(n)
        if n >= cfg.ho_thr: e(f"s_waitcnt vmcnt({cfg.ho_thr})")
    if cfg.nearly:
        e("s_waitcnt vmcnt(0)")
        transpose(WO, TO, lambda r, i: 99, 0, 0, cfg.nearly // 2)
    def weights():
        for k in range(4):
            e(f"ds_read_b128 v[{8+4*k}:{11+4*k}], v7 offset:{L_ML+16*k}")
        e("s_waitcnt lgkmcnt(0)")
        e("v_max3_f32 v24, v8, v10, v12")
        e("v_max3_f32 v25, v14, v16, v18")
        e("v_max3_f32 v24, v24, v20, v22")
        e("v_max_f32 v24, v24, v25")
        for w in range(8):
            e(f"v_sub_f32 v{8+2*w}, v{8+2*w}, v24")
        for w in range(8):
            e(f"v_exp_f32 v{8+2*w}, v{8+2*w}")
        e("v_mul_f32 v25, v8, v9")
        e("v_mul_f32 v26, v10, v11")
        for w in range(2, 8):
            e(f"v_fmac_f32 v{25+(w&1)}, v{8+2*w}, v{9+2*w}")
        e("v_add_f32 v25, v25, v26")
        e("v_rcp_f32 v25, v25")
        e("s_nop 0")
        for w in range(8):
            e(f"v_mul_f32 v{8+2*w}, v{8+2*w}, v25")
    lds_spin("w0", L_FLAG+12, "ge", 8, 152, 154, 15, sleep=2)
    weights()
    if cfg.wo_at:
        lds_spin("w1", L_FLAG+8, "ge", cfg.wo_at, 152, 154, 15, sleep=1)
    stamp(3)
    e("buffer_load_dword v159, v156, s[48:51], 0 offen sc1")
    for n in range(cfg.nearly, 16): woload(n)
    e("s_cmp_eq_u32 s97, s57")
    stamp(6)
    e("s_barrier")
    stamp(7)
    for w in range(8):
        e(f"ds_read_b64 v[{24+2*w}:{25+2*w}], v6 offset:{L_PART+2048*w}")
    e("s_waitcnt lgkmcnt(6)")
    e("v_pk_mul_f32 v[72:73], v[24:25], v[8:9] op_sel_hi:[1,0]")
    e("v_pk_mul_f32 v[74:75], v[26:27], v[10:11] op_sel_hi:[1,0]")
    for w in range(2, 8):
        if w % 2 == 0: e(f"s_waitcnt lgkmcnt({6-w})")
        d = 72 + 2*(w & 1)
        e(f"v_pk_fma_f32 v[{d}:{d+1}], v[{24+2*w}:{25+2*w}], v[{8+2*w}:{9+2*w}], v[{d}:{d+1}] op_sel_hi:[1,0,1]")
    e("v_pk_add_f32 v[72:73], v[72:73], v[74:75]")
    e("v_cvt_pk_bf16_f32 v72, v72, v73")
    e("v_min_u32 v72, -2, v72")
    gather4(72)
    e("s_mov_b64 exec, s[58:59]")
    if cfg.local:
        e("s_cbranch_scc1 L_ol")
        e("buffer_store_dwordx4 v[72:75], v160, s[44:47], s96 offen sc1")
        e("s_branch L_og")
        e("L_ol:")
        e("buffer_store_dwordx4 v[72:75], v160, s[44:47], s96 offen")
        e("L_og:")
    else:
        e("buffer_store_dwordx4 v[72:75], v160, s[44:47], s96 offen sc1")
    e("s_mov_b64 exec, -1")
    stamp(8)
    def opoll():
        e(f"buffer_load_dwordx4 v[{XB}:{XB+3}], v5, s[44:47], s10 offen sc1")
        e(f"buffer_load_dwordx4 v[{XB+4}:{XB+7}], v5, s[44:47], s10 offen offset:64 sc1")
    opoll()
    transpose(WO, TO, lambda r, i: 15 - (8*r + i) + 3, 99, cfg.nearly // 2, 8)
    if cfg.nearly == 16: e("s_waitcnt vmcnt(3)")
    e("L_ga:")
    e("v_cmp_gt_u32 vcc, s56, v159")
    stamp(14)
    e("s_cbranch_vccz L_opw")
    e("s_sub_u32 s15, s15, 1")
    e("s_cbranch_scc1 L_opw")
    e("s_sleep 16")
    e("buffer_load_dword v159, v156, s[48:51], 0 offen sc1")
    e("s_waitcnt vmcnt(0)")
    e("s_branch L_ga")
    e("L_op:")
    opoll()
    e("L_opw:")
    def mf(n):
        r, j = n >> 2, n & 3
        a = AC + 4*j
        src = "0" if r == 0 else f"v[{a}:{a+3}]"
        t = TO + 16*r + 4*j
        e(f"v_mfma_f32_16x16x32_bf16 v[{a}:{a+3}], v[{t}:{t+3}], v[{XB+4*r}:{XB+4*r+3}], {src}")
    e("s_waitcnt vmcnt(1)")
    if cfg.spec: mf(0)
    e(f"v_max3_u32 v40, v{XB}, v{XB+1}, v{XB+2}")
    if cfg.spec: mf(1)
    e("s_waitcnt vmcnt(0)")
    e(f"v_max3_u32 v41, v{XB+3}, v{XB+4}, v{XB+5}")
    e(f"v_max3_u32 v40, v40, v{XB+6}, v{XB+7}")
    if cfg.spec: mf(2)
    e("v_max_u32 v40, v40, v41")
    e("v_cmp_eq_u32 vcc, -1, v40")
    if cfg.spec: mf(3)
    e("s_cbranch_vccz L_op_done")
    e("s_sub_u32 s15, s15, 1")
    e("s_cbranch_scc0 L_op")
    e("L_op_done:")
    stamp(9)
    for n in range(4 if cfg.spec else 0, 8): mf(n)
    e("s_nop 4")
    for j in range(4):
        a = AC + 4*j
        e(f"ds_write_b128 v149, v[{a}:{a+3}] offset:{L_RED + 1280*j}")
    e("s_waitcnt lgkmcnt(0)")
    e("s_barrier")
    reduce()
    for k in range(4): e(f"v_min_u32 v{24+k}, -2, v{24+k}")
    e("buffer_store_dwordx4 v[24:27], v161, s[44:47], s14 offen sc1")
    stamp(10)
    e("s_cmp_lg_u32 s3, 0")
    e("s_cbranch_scc1 L_hend")
    e(f"s_mov_b32 s15, {cfg.spin_max}")
    e("L_fp:")
    for k in range(4):
        e(f"buffer_load_dwordx4 v[{8+4*k}:{11+4*k}], v155, s[44:47], s60 offen offset:{1024*k} sc1")
    e("s_waitcnt vmcnt(0)")
    e("v_max3_u32 v40, v8, v9, v10")
    e("v_max3_u32 v41, v11, v12, v13")
    e("v_max3_u32 v42, v14, v15, v16")
    e("v_max3_u32 v43, v17, v18, v19")
    e("v_max3_u32 v40, v40, v20, v21")
    e("v_max3_u32 v41, v41, v22, v23")
    e("v_max3_u32 v40, v40, v42, v43")
    e("v_max_u32 v40, v40, v41")
    e("v_cmp_eq_u32 vcc, -1, v40")
    e("s_cbranch_vccz L_fp_done")
    e("s_sub_u32 s15, s15, 1")
    e("s_cbranch_scc0 L_fp")
    e("L_fp_done:")
    stamp(11)
    e("v_pk_add_f32 v[8:9], v[8:9], v[12:13]")
    e("v_pk_add_f32 v[10:11], v[10:11], v[14:15]")
    e("v_pk_add_f32 v[16:17], v[16:17], v[20:21]")
    e("v_pk_add_f32 v[18:19], v[18:19], v[22:23]")
    e("v_pk_add_f32 v[8:9], v[8:9], v[16:17]")
    e("v_pk_add_f32 v[10:11], v[10:11], v[18:19]")
    e("s_nop 1")
    e("v_permlane32_swap_b32 v8, v10")
    e("v_permlane32_swap_b32 v9, v11")
    e("v_add_f32 v8, v8, v10")
    e("v_add_f32 v9, v9, v11")
    e("v_mov_b32 v10, v8"); e("v_mov_b32 v11, v9")
    e("s_nop 1")
    e("v_permlane16_swap_b32 v8, v10")
    e("v_permlane16_swap_b32 v9, v11")
    e("v_add_f32 v8, v8, v10")
    e("v_add_f32 v9, v9, v11")
    e("v_cvt_pk_bf16_f32 v8, v8, v9")
    e("s_mov_b32 exec_lo, 0x0000ffff"); e("s_mov_b32 exec_hi, 0x0000ffff")
    e("buffer_store_dword v8, v158, s[52:55], s12 offen")
    if cfg.stamps or lk or hk:
        e("s_waitcnt vmcnt(0)")
    stamp(12)
    if hk:
        e("s_waitcnt lgkmcnt(0)")
        e(f"s_sub_u32 s11, s{64+2*hk[1]}, s{64+2*hk[0]}")
        if len(hk) > 3:
            e(f"s_min_u32 s11, s11, {hk[3]}")
            e(f"s_sub_u32 s11, {hk[3]}, s11")
        else:
            e(f"s_max_u32 s11, s11, {cfg.hsub}")
            e(f"s_sub_u32 s11, s11, {cfg.hsub}")
        e(f"s_mul_i32 s11, s11, {hk[2]}")
        e("s_min_u32 s11, s11, 20000")
        e("s_add_u32 s11, s11, 2000")
        e("L_hleak:")
        e("s_memrealtime s[100:101]")
        e("s_waitcnt lgkmcnt(0)")
        e("s_sub_u32 s12, s100, s64")
        e("s_cmp_lt_u32 s12, s11")
        e("s_cbranch_scc1 L_hleak")
    if lk:
        if cfg.lsel:
            reg, val = cfg.lsel.split(",")
            e(f"s_cmp_lg_u32 {reg}, {val}")
            e("s_cbranch_scc1 L_hend")
        e("s_memrealtime s[98:99]")
        e("s_waitcnt lgkmcnt(0)")
        e(f"s_sub_u32 s11, s{64+2*lk[1]}, s{64+2*lk[0]}")
        if len(lk) > 3:
            e(f"s_min_u32 s11, s11, {lk[3]}")
            e(f"s_sub_u32 s11, {lk[3]}, s11")
        e(f"s_mul_i32 s11, s11, {lk[2]}")
        e("s_min_u32 s11, s11, 20000")
        e("L_leak:")
        e("s_memrealtime s[100:101]")
        e("s_waitcnt lgkmcnt(0)")
        e("s_sub_u32 s12, s100, s98")
        e("s_cmp_lt_u32 s12, s11")
        e("s_cbranch_scc1 L_leak")
    e("L_hend:")
    write_stamps()
    e("L_end:")
    e("s_endpgm")

    body = "\n".join(x if x.endswith(":") else "    " + x for x in L)
    return (HDR + f"; @launch grid=(256,1,1) block=(768,1,1) lds={LDS_BYTES}\n"
        + f""".amdgcn_target "amdgcn-amd-amdhsa--gfx950"
.text
.globl {KN}_kernel
.p2align 8
.type {KN}_kernel,@function
{KN}_kernel:
""" + body + f"""
.section .rodata,"a"
.p2align 6
.amdhsa_kernel {KN}_kernel
  .amdhsa_next_free_vgpr 168
  .amdhsa_next_free_sgpr 102
  .amdhsa_accum_offset 168
  .amdhsa_group_segment_fixed_size 0
  .amdhsa_kernarg_size 64
  .amdhsa_user_sgpr_count 2
  .amdhsa_user_sgpr_kernarg_segment_ptr 1
  .amdhsa_system_sgpr_workgroup_id_x 1
.end_amdhsa_kernel
""")

if __name__ == "__main__":
    cfg = Cfg()
    out = sys.argv[1]
    for kv in sys.argv[2:]:
        k, v = kv.split("=")
        assert hasattr(cfg, k), k
        if v == "None": v = None
        elif v in ("True", "False"): v = (v == "True")
        else:
            try: v = int(v, 0)
            except ValueError: v = v.replace("+", " ")
        setattr(cfg, k, v)
    txt = gen(cfg)
    sys.path.insert(0, os.path.dirname(__file__))
    import hazcheck
    assert hazcheck.check(txt) == 0
    open(out, "w").write(txt)
```

```python
import sys, os
KN = "standalone__sliding_block_cached__sampling"

HDR = """; Kernarg layout for this problem (64 bytes, ptrs only, base s[0:1]):
;   offset   0: d_in[0] x  shape=(32, 1, 512) dtype=bfloat16 strides=(1024, 1024, 2) contiguous=True
;   offset   8: d_in[1] k_cache  shape=(32, 8, 2048, 128) dtype=bfloat16 strides=(4194304, 524288, 256, 2) contiguous=True
;   offset  16: d_in[2] v_cache  shape=(32, 8, 2048, 128) dtype=bfloat16 strides=(4194304, 524288, 256, 2) contiguous=True
;   offset  24: d_in[3] wq  shape=(512, 4096) dtype=bfloat16 strides=(8192, 2) contiguous=True
;   offset  32: d_in[4] wo  shape=(4096, 512) dtype=bfloat16 strides=(1024, 2) contiguous=True
"""

class Cfg:
    stamps = False
    nk_thr = 2
    nv_thr = 2
    nv_pre = 8
    nv_extra = 3
    h_thr = 5
    wo_at = 8
    nearly = 0
    ho_thr = 3
    chk_at = 17
    spec = True
    spin_max = 0x40000
    xnt = ""
    boost = 0
    nb3 = 8
    nbodd = 0
    local = True
    leak = None
    lsel = None
    tleak = None
    hleak = None
    hsub = 0

WS_USED = 0x200000
STAMP_WS = 0x10000000
L_FLAG = 0
L_ML = 256
L_Q = 512
L_PART = 1536
L_RED = L_PART + 16384
LDS_BYTES = L_RED + 16 * 1280
S_Q, S_O, S_P = 0, 2048, 4096
NST = 16

def gen(cfg):
    L = []
    e = L.append
    lk = [int(x) for x in cfg.leak.split(",")] if cfg.leak else None
    tk = [int(x) for x in cfg.tleak.split(",")] if cfg.tleak else None
    hk = [int(x) for x in cfg.hleak.split(",")] if cfg.hleak else None
    def stamp(i):
        if cfg.stamps or (lk and i in lk[:2]) or (tk and (i in tk[:2] or i == 0)) or (hk and (i in hk[:2] or i == 0)):
            e(f"s_memrealtime s[{64+2*i}:{65+2*i}]")
    def srd_c(d, size):
        e(f"s_mov_b32 s{d+2}, {size:#x}"); e(f"s_mov_b32 s{d+3}, 0x20000")
    def srd_p(d, lo):
        e(f"s_mov_b64 s[{d}:{d+1}], s[{lo}:{lo+1}]")
    def write_stamps():
        if not cfg.stamps: return
        e("s_waitcnt lgkmcnt(0) vmcnt(0)")
        e("s_sleep 64")
        srd_p(56, 30); srd_c(56, 0x20000000)
        e("s_mul_i32 s60, s2, 12"); e("s_add_u32 s60, s60, s3"); e(f"s_mul_i32 s60, s60, {NST*8}")
        e(f"s_add_u32 s60, s60, {STAMP_WS:#x}")
        e("s_mov_b64 exec, 1")
        e("v_mov_b32 v2, 0")
        for j in range(NST):
            e(f"v_mov_b32 v4, s{64+2*j}"); e(f"v_mov_b32 v5, s{65+2*j}")
            e(f"buffer_store_dwordx2 v[4:5], v2, s[56:59], s60 offen offset:{8*j}")
            e("s_waitcnt vmcnt(0)")
    def dpp(op, d, s0, s1, ctl, bank=0xf):
        if s1 is None: e(f"{op}_dpp v{d}, v{s0} {ctl} row_mask:0xf bank_mask:{bank:#x}")
        else: e(f"{op}_dpp v{d}, v{s0}, v{s1} {ctl} row_mask:0xf bank_mask:{bank:#x}")
    def lds_spin(name, off, cmp, val, vaddr, vtmp, cnt, sleep=1):
        e(f"L_{name}:")
        e(f"ds_read_b32 v{vtmp}, v{vaddr} offset:{off}")
        e("s_waitcnt lgkmcnt(0)")
        e(f"v_readfirstlane_b32 s11, v{vtmp}")
        e(f"s_sub_u32 s{cnt}, s{cnt}, 1")
        e(f"s_cbranch_scc1 L_{name}_done")
        e(f"s_cmp_{cmp}_u32 s11, {val}")
        if sleep:
            e(f"s_cbranch_scc1 L_{name}_done")
            e(f"s_sleep {sleep}")
            e(f"s_branch L_{name}")
        else:
            e(f"s_cbranch_scc0 L_{name}")
        e(f"L_{name}_done:")

    KB, VB, QB, DT, RB, CB, ACC = 8, 72, 136, 140, 144, 148, 152
    stamp(0)
    e("s_load_dwordx16 s[16:31], s[0:1], 0")
    e("v_lshrrev_b32 v1, 6, v0")
    e("s_cmp_ge_u32 s2, 256")
    e("s_cbranch_scc1 L_end")
    e("v_readfirstlane_b32 s3, v1")
    e("v_and_b32 v0, 63, v0")
    e("s_lshr_b32 s5, s2, 3")
    e("s_cmp_lt_u32 s3, 4")
    e("s_cbranch_scc1 L_helper")

    e("s_setprio 3")
    e("s_sub_u32 s6, s3, 4")
    e("s_lshl_b32 s10, s2, 19")
    e("s_lshl_b32 s11, s6, 14")
    e("s_add_u32 s10, s10, s11")
    e(f"s_add_u32 s10, s10, {1536*256}")
    e("s_lshl_b32 s11, s5, 12")
    e("s_xor_b32 s10, s10, s11")
    e("v_and_b32 v3, 3, v0")
    e("v_bfe_u32 v4, v0, 2, 2")
    e("v_lshrrev_b32 v5, 4, v0")
    e("v_lshlrev_b32 v5, 6, v5")
    e("v_lshl_add_u32 v1, v4, 8, v5")
    e("v_lshl_add_u32 v1, v3, 4, v1")
    e("v_lshlrev_b32 v2, 4, v0")
    srd_c(32, 0x8000000); srd_c(36, 0x8000000)
    e("v_mov_b32 v4, 0"); e("v_mov_b32 v5, 0"); e("v_mov_b32 v6, 0"); e("v_mov_b32 v7, 0")
    tcount = [0]
    def thr(n):
        if cfg.boost:
            tcount[0] += 1
            e(f"s_waitcnt vmcnt({n + cfg.boost})")
            e(f"s_cbranch_vccnz L_thr{tcount[0]}")
            e(f"s_waitcnt vmcnt({n})")
            e(f"L_thr{tcount[0]}:")
        else:
            e(f"s_waitcnt vmcnt({n})")
    if cfg.boost:
        e("s_and_b32 s11, s5, 7")
        e("s_cmp_eq_u32 s11, 3")
        e(f"s_cselect_b32 s12, {cfg.nb3}, 0")
        if cfg.nbodd:
            e("s_getreg_b32 s11, hwreg(HW_REG_XCC_ID, 0, 1)")
            e(f"s_mul_i32 s11, s11, {cfg.nbodd}")
            e("s_add_u32 s12, s12, s11")
        e("s_cmp_lt_u32 s6, s12")
        e("s_cselect_b64 vcc, -1, 0")
    e("s_waitcnt lgkmcnt(0)")
    srd_p(32, 18); srd_p(36, 20)
    first = 3 if cfg.nk_thr is None else cfg.nk_thr + 1
    n = 0
    for i in range(16):
        if i % 4 == 0 and i: e(f"s_xor_b32 s11, s10, {(i//4)*4096}")
        r = KB + 4*i
        e(f"buffer_load_dwordx4 v[{r}:{r+3}], v1, s[32:35], {'s11' if i >= 4 else 's10'} offen offset:{(i%4)*1024} nt")
        n += 1
        if n == first:
            e("s_setprio 0")
            e("ds_write_b128 v4, v[4:7]")
            e("s_waitcnt lgkmcnt(0)")
            e("s_barrier")
        if cfg.nk_thr is not None and n > cfg.nk_thr: thr(cfg.nk_thr)
        if n % 2 == 0 and n < 16: stamp(5 + n // 2)
    if cfg.stamps:
        for j in (13, 14, 15):
            e(f"s_mov_b64 s[{64+2*j}:{65+2*j}], 0")
    stamp(1)
    e(f"s_mov_b32 s12, {cfg.spin_max}")
    npre = min(16, cfg.nv_pre + cfg.nv_extra)
    def vload(i):
        if i % 4 == 0 or i == npre: e(f"s_xor_b32 s13, s10, {(i//4)*4096}")
        r = VB + 4*i
        e(f"buffer_load_dwordx4 v[{r}:{r+3}], v2, s[36:39], s13 offen offset:{(i%4)*1024} nt")
    for i in range(npre):
        vload(i)
        if cfg.nv_thr is not None and i < cfg.nv_pre: thr(cfg.nv_thr)
    stamp(2)
    e("s_mov_b32 s8, 0x05040100")
    e("s_mov_b32 s9, 0x07060302")
    e("s_mov_b32 s14, 0x3e0293ee")
    lds_spin("tq", L_FLAG+4, "eq", 1, 4, 6, 12)
    e(f"ds_read_b128 v[{QB}:{QB+3}], v2 offset:{L_Q}")
    e(f"s_waitcnt vmcnt({npre}) lgkmcnt(0)")
    stamp(3)
    D = lambda l: DT if l == 0 else KB + 4*(l-1)
    def red12(l):
        tb = (l >> 1) & 3; t2 = tb ^ 1
        dpp("v_add_f32", D(l)+tb, D(l)+(tb^2), D(l)+tb, "row_ror:8")
        dpp("v_add_f32", D(l)+t2, D(l)+(t2^2), D(l)+t2, "row_ror:8")
    def red3(l):
        tb = (l >> 1) & 3; t2 = tb ^ 1
        dpp("v_add_f32", RB + (l >> 3)*2 + (l & 1), D(l)+t2, D(l)+tb, f"row_ror:{4*((tb-t2)&3)}", 1 << tb)
    LAG = 4
    masks = ["s_mov_b32 s48, 0x000f000f", "s_mov_b32 s49, 0x000f000f", "s_mov_b32 s50, 0x00f000f0", "s_mov_b32 s51, 0x00f000f0",
             "s_mov_b32 s52, 0x0f000f00", "s_mov_b32 s53, 0x0f000f00", "s_mov_b32 s54, 0xf000f000", "s_mov_b32 s55, 0xf000f000"]
    for l in range(16 + LAG + 1):
        if l < 16:
            a = KB + 4*l
            e(f"v_mfma_f32_16x16x32_bf16 v[{D(l)}:{D(l)+3}], v[{a}:{a+3}], v[{QB}:{QB+3}], 0")
            if l < LAG: e(masks[2*l]); e(masks[2*l+1])
        if 0 <= l - LAG < 16: red12(l - LAG)
        if 0 <= l - LAG - 1 < 16: red3(l - LAG - 1)
        if l == 16 + LAG - 1: e("s_nop 0")
    e(f"v_max3_f32 v5, v{RB}, v{RB+1}, v{RB+2}")
    e(f"v_max_f32 v5, v5, v{RB+3}")
    e("s_lshl_b32 s11, s6, 3")
    e("v_lshl_add_u32 v3, v3, 6, s11")
    dpp("v_max_f32", 5, 5, 5, "row_ror:8")
    e("s_lshl_b32 s11, s6, 11")
    e("v_add_u32 v1, s11, v2")
    dpp("v_max_f32", 5, 5, 5, "row_ror:4")
    e("v_mov_b32 v6, v5")
    e("s_nop 1")
    e("v_permlane32_swap_b32 v5, v6")
    e("v_max_f32 v5, v5, v6")
    e("v_mov_b32 v6, v5")
    e("s_nop 1")
    e("v_permlane16_swap_b32 v5, v6")
    e("v_max_f32 v5, v5, v6")
    e("v_mul_f32 v6, s14, v5")
    for i in range(4):
        e(f"v_fma_f32 v{RB+i}, v{RB+i}, s14, -v6")
    for i in range(4):
        e(f"v_exp_f32 v{RB+i}, v{RB+i}")
    e("v_mov_b32 v150, 1")
    e(f"v_add_f32 v7, v{RB}, v{RB+1}")
    e(f"v_add_f32 v5, v{RB+2}, v{RB+3}")
    e("v_add_f32 v7, v7, v5")
    e(f"v_cvt_pk_bf16_f32 v{CB}, v{RB}, v{RB+1}")
    e(f"v_cvt_pk_bf16_f32 v{CB+1}, v{RB+2}, v{RB+3}")
    PM = KB
    cm = [f"v_cndmask_b32 v{PM+16*u+4*k+k}, 0, v{CB+u}, s[{48+2*k}:{49+2*k}]" for u in range(2) for k in range(4)]
    dpp("v_add_f32", 7, 7, 7, "row_ror:8")
    e(cm[0]); e(cm[1])
    dpp("v_add_f32", 7, 7, 7, "row_ror:4")
    e("v_mov_b32 v5, v7")
    e(cm[2]); e(cm[3])
    e("v_permlane32_swap_b32 v7, v5"); e("v_add_f32 v7, v7, v5"); e("v_mov_b32 v5, v7")
    e(cm[4]); e(cm[5])
    e("v_permlane16_swap_b32 v7, v5"); e("v_add_f32 v7, v7, v5")
    e(f"ds_write_b64 v3, v[6:7] offset:{L_ML}")
    e("s_mov_b64 exec, 1")
    e(f"ds_add_u32 v4, v150 offset:{L_FLAG+12}")
    e("s_mov_b64 exec, -1")
    for i in range(npre, 16):
        vload(i)
    e("s_mov_b64 exec, 1")
    e(f"ds_add_u32 v4, v150 offset:{L_FLAG+8}")
    e("s_mov_b64 exec, -1")
    e(cm[6]); e(cm[7])
    for u in range(2):
        for q4 in range(4):
            for k in range(4):
                if k == q4: continue
                dpp("v_mov_b32", PM+16*u+4*q4+k, PM+16*u+4*k+k, None, f"row_ror:{4*((q4-k)&3)}")
    stamp(4)
    for u in range(2):
        TB = KB + 32 if u == 0 else VB
        for ip in range(4):
            rem = 16 - (8*u + 2*ip + 2)
            e(f"s_waitcnt vmcnt({rem})")
            r0 = VB + 32*u + 8*ip; r1 = r0 + 4
            for w in range(4):
                e(f"v_perm_b32 v{TB+4*(2*w)+ip}, v{r1+w}, v{r0+w}, s8")
                e(f"v_perm_b32 v{TB+4*(2*w+1)+ip}, v{r1+w}, v{r0+w}, s9")
        for j in (0, 1, 4, 2, 5, 3, 6, 7):
            a = ACC + 4*(j >> 2)
            src = "0" if (u == 0 and (j & 3) == 0) else f"v[{a}:{a+3}]"
            b = PM + 16*u + 4*(j & 3)
            e(f"v_mfma_f32_16x16x32_bf16 v[{a}:{a+3}], v[{TB+4*j}:{TB+4*j+3}], v[{b}:{b+3}], {src}")
    e("s_nop 5")
    e(f"ds_write_b128 v1, v[{ACC}:{ACC+3}] offset:{L_PART}")
    e("s_nop 0")
    e(f"ds_write_b128 v1, v[{ACC+4}:{ACC+7}] offset:{L_PART+1024}")
    e("s_waitcnt lgkmcnt(0)")
    stamp(5)
    e("s_barrier")
    if cfg.stamps or tk:
        e("s_barrier")
    if tk:
        e("s_waitcnt lgkmcnt(0)")
        e(f"s_sub_u32 s11, s{64+2*tk[1]}, s{64+2*tk[0]}")
        if len(tk) > 3:
            e(f"s_min_u32 s11, s11, {tk[3]}")
            e(f"s_sub_u32 s11, {tk[3]}, s11")
        e(f"s_mul_i32 s11, s11, {tk[2]}")
        if cfg.lsel:
            reg, val = cfg.lsel.split(",")
            e(f"s_cmp_eq_u32 {reg}, {val}")
            e("s_cselect_b32 s11, s11, 0")
        e("s_min_u32 s11, s11, 20000")
        e("s_add_u32 s11, s11, 2000")
        e("L_tleak:")
        e("s_sleep 4")
        e("s_memrealtime s[100:101]")
        e("s_waitcnt lgkmcnt(0)")
        e("s_sub_u32 s12, s100, s64")
        e("s_cmp_lt_u32 s12, s11")
        e("s_cbranch_scc1 L_tleak")
    write_stamps()
    e("s_endpgm")

    WQ, WO, TQ, TO, XB = 8, 40, 72, 104, 136
    e("L_helper:")
    e("s_and_b32 s4, s2, 7")
    e("s_lshl_b32 s62, s2, 13")
    e("s_lshr_b32 s6, s5, 3")
    e("s_and_b32 s7, s5, 7")
    e("s_and_b32 s59, s6, 1")
    e("s_lshr_b32 s58, s6, 1")
    e("v_lshrrev_b32 v1, 4, v0")
    e("v_and_b32 v3, 15, v0")
    e("v_lshlrev_b32 v7, 4, v1")
    e("v_lshl_add_u32 v5, v3, 10, v7")
    e("v_lshlrev_b32 v6, 16, v1")
    e("v_lshl_add_u32 v6, v3, 3, v6")
    e("s_lshl_b32 s63, s58, 14"); e("s_lshl_b32 s11, s59, 9"); e("s_add_u32 s63, s63, s11")
    e("s_lshl_b32 s10, s3, 7"); e("s_add_u32 s63, s63, s10"); e("s_add_u32 s10, s10, s11")
    e("s_lshl_b32 s12, s10, 12")
    e("s_lshl_b32 s11, s4, 10"); e("s_add_u32 s12, s12, s11")
    e("s_lshl_b32 s14, s7, 7"); e("s_add_u32 s12, s12, s14")
    srd_c(32, 0x8000); srd_c(36, 0x400000); srd_c(44, WS_USED); srd_c(48, 256)
    for r in range(144, 148): e(f"v_mov_b32 v{r}, -1")
    e("v_lshlrev_b32 v155, 4, v0")
    e("v_lshlrev_b32 v156, 4, v3")
    e("s_lshl_b32 s15, s58, 3"); e("s_add_u32 s15, s15, s4"); e("s_lshl_b32 s15, s15, 4")
    e("s_getreg_b32 s61, hwreg(HW_REG_XCC_ID, 0, 3)")
    e("s_mul_i32 s11, s61, s61"); e("s_lshl_b32 s11, s11, 8"); e("s_add_u32 s61, s61, s11"); e("s_add_u32 s61, s61, 0x100000")
    e("s_lshl_b32 s57, s61, 4")
    e(f"s_add_u32 s60, s62, {S_P}")
    e("s_cmp_lg_u32 s3, 0")
    e("s_waitcnt lgkmcnt(0)")
    srd_p(44, 30); srd_p(32, 16); srd_p(36, 22); srd_p(48, 28)
    e("s_cbranch_scc1 L_noclear")
    for k in range(3):
        e(f"buffer_store_dwordx4 v[144:147], v155, s[44:47], s62 offen offset:{1024*k} sc1")
    for k in range(4):
        e(f"buffer_store_dwordx4 v[144:147], v155, s[44:47], s60 offen offset:{1024*k} sc1")
    e("L_noclear:")
    seq = [("x", 0, 0), ("x", 1, 0)] + [("wq", r, i) for r in range(2) for i in range(8)]
    pos = {x: n for n, x in enumerate(seq)}
    for n, (k, r, i) in enumerate(seq):
        if k == "wq":
            d = WQ + 16*r + 2*i
            if r or i: e(f"s_add_u32 s11, s12, {(r*32+i)*8192}")
            e(f"buffer_load_dwordx2 v[{d}:{d+1}], v6, s[36:39], {'s11' if (r or i) else 's12'} offen nt")
        elif k == "x":
            e(f"buffer_load_dwordx4 v[{XB+4*r}:{XB+4*r+3}], v5, s[32:35], s63 offen offset:{64*r} {cfg.xnt}")
        if n == cfg.h_thr:
            e("s_setprio 3")
            e("s_barrier")
        if n >= cfg.h_thr and n < len(seq) - 1: e(f"s_waitcnt vmcnt({cfg.h_thr})")
        if n == cfg.h_thr:
            e("s_cmp_lg_u32 s3, 0")
            e("s_cbranch_scc1 L_noarr")
            e("s_atomic_add s61, s[28:29], s15 glc")
            e("L_noarr:")
        if n == cfg.chk_at:
            e("s_mov_b32 s97, 0")
            e("s_cmp_lg_u32 s3, 0")
            e("s_cbranch_scc1 L_nochk")
            e("s_waitcnt lgkmcnt(0)")
            e("s_atomic_add s97, s[28:29], s15 glc")
            e("L_nochk:")
    if cfg.stamps:
        for j in range(1, NST):
            e(f"s_mov_b64 s[{64+2*j}:{65+2*j}], 0")
    stamp(13)
    e("s_mov_b32 s8, 0x05040100")
    e("s_mov_b32 s9, 0x07060302")
    srd_p(52, 26); srd_c(52, 0x8000)
    srd_p(40, 24); srd_c(40, 0x400000)
    e("v_and_b32 v4, 1, v1"); e("v_lshlrev_b32 v4, 8, v4")
    e("v_lshrrev_b32 v2, 1, v1"); e("v_add_u32 v4, v4, v2")
    e("v_lshlrev_b32 v4, 10, v4"); e("v_lshl_add_u32 v4, v3, 3, v4")
    e("s_lshl_b32 s13, s4, 19"); e("s_add_u32 s13, s13, s14")
    e("s_lshl_b32 s11, s3, 15"); e("s_add_u32 s13, s13, s11")
    e("s_lshl_b32 s11, s59, 12"); e("s_add_u32 s13, s13, s11")
    e("s_lshl_b32 s12, s58, 7"); e("s_add_u32 s12, s12, s4"); e("s_lshl_b32 s12, s12, 13")
    e("s_add_u32 s10, s10, s12"); e(f"s_add_u32 s10, s10, {S_O}")
    e("v_lshl_add_u32 v5, v3, 16, v7")
    e("s_lshl_b32 s63, s3, 18"); e("s_add_u32 s63, s63, s12"); e("s_add_u32 s63, s63, s14")
    e("s_lshl_b32 s11, s59, 10"); e("s_add_u32 s63, s63, s11")
    e("v_lshlrev_b32 v162, 16, v1"); e("v_lshl_add_u32 v162, v3, 3, v162")
    e("s_lshl_b32 s11, s3, 8"); e("s_add_u32 s96, s62, s11"); e(f"s_add_u32 s96, s96, {S_O}")
    e("v_lshlrev_b32 v160, 2, v0")
    e("s_lshl_b32 s12, s6, 3"); e("s_add_u32 s12, s12, s4"); e("s_lshl_b32 s12, s12, 10"); e("s_add_u32 s12, s12, s14")
    e("s_lshl_b32 s14, s58, 7"); e("s_lshr_b32 s11, s3, 1"); e("s_lshl_b32 s11, s11, 6"); e("s_add_u32 s14, s14, s11")
    e("s_lshl_b32 s11, s7, 3"); e("s_add_u32 s14, s14, s11")
    e("s_and_b32 s11, s3, 1"); e("s_lshl_b32 s11, s11, 2"); e("s_add_u32 s14, s14, s11")
    e("s_lshl_b32 s14, s14, 13")
    e("s_lshl_b32 s11, s4, 1"); e("s_add_u32 s11, s11, s59"); e("s_lshl_b32 s11, s11, 8"); e("s_add_u32 s14, s14, s11")
    e(f"s_add_u32 s14, s14, {S_P}")
    e("v_lshlrev_b32 v161, 13, v1"); e("v_lshl_add_u32 v161, v3, 4, v161")
    e("s_mov_b32 s58, 0x11111111"); e("s_mov_b32 s59, 0x11111111")
    e("v_mov_b32 v152, 0"); e("v_mov_b32 v153, 1")
    e("v_mul_u32_u24 v149, 288, v1")
    e("v_lshl_add_u32 v149, v3, 4, v149")
    e("s_mul_i32 s11, s3, 5120")
    e("v_add_u32 v149, s11, v149")
    e("v_bfe_u32 v157, v0, 2, 2")
    e("v_mul_u32_u24 v150, 288, v157")
    e("v_add_u32 v150, v150, v7")
    e("v_and_b32 v151, 3, v0")
    e("v_lshl_add_u32 v150, v151, 2, v150")
    e("s_lshl_b32 s11, s3, 6"); e(f"s_add_u32 s11, s11, {L_RED}")
    e("v_add_u32 v150, s11, v150")

    def transpose(W, T, remf, thr, lo=0, hi=8):
        for r in range(2):
            for ip in range(4):
                if not (lo <= 4*r + ip < hi): continue
                rem = remf(r, 2*ip + 1)
                if rem <= thr: e(f"s_waitcnt vmcnt({rem})")
                r0 = W + 16*r + 4*ip; r1 = r0 + 2
                for w in range(2):
                    e(f"v_perm_b32 v{T+16*r+4*(2*w)+ip}, v{r1+w}, v{r0+w}, s8")
                    e(f"v_perm_b32 v{T+16*r+4*(2*w+1)+ip}, v{r1+w}, v{r0+w}, s9")
    AC = 8
    def proj_mfma(T):
        for r in range(2):
            for j in range(4):
                a = AC + 4*j
                src = "0" if r == 0 else f"v[{a}:{a+3}]"
                t = T + 16*r + 4*j
                e(f"v_mfma_f32_16x16x32_bf16 v[{a}:{a+3}], v[{t}:{t+3}], v[{XB+4*r}:{XB+4*r+3}], {src}")
        e("s_nop 4")
        for j in range(4):
            a = AC + 4*j
            e(f"ds_write_b128 v149, v[{a}:{a+3}] offset:{L_RED + 1280*j}")
    def reduce():
        for w in range(4):
            for jp in range(2):
                e(f"ds_read2st64_b32 v[{24+4*w+2*jp}:{25+4*w+2*jp}], v150 offset0:{5*(4*w+2*jp)} offset1:{5*(4*w+2*jp+1)}")
        e("s_waitcnt lgkmcnt(4)")
        e("v_pk_add_f32 v[24:25], v[24:25], v[28:29]")
        e("v_pk_add_f32 v[26:27], v[26:27], v[30:31]")
        e("s_waitcnt lgkmcnt(2)")
        e("v_pk_add_f32 v[24:25], v[24:25], v[32:33]")
        e("v_pk_add_f32 v[26:27], v[26:27], v[34:35]")
        e("s_waitcnt lgkmcnt(0)")
        e("v_pk_add_f32 v[24:25], v[24:25], v[36:37]")
        e("v_pk_add_f32 v[26:27], v[26:27], v[38:39]")
    def gather4(r):
        e("s_nop 1")
        dpp("v_mov_b32", r+1, r, None, "quad_perm:[1,1,1,1]")
        dpp("v_mov_b32", r+2, r, None, "quad_perm:[2,2,2,2]")
        dpp("v_mov_b32", r+3, r, None, "quad_perm:[3,3,3,3]")
    def gather2(r):
        e("s_nop 1")
        dpp("v_mov_b32", r+2, r, None, "quad_perm:[1,1,3,3]")
        dpp("v_mov_b32", r+3, r+1, None, "quad_perm:[1,1,3,3]")

    transpose(WQ, TQ, lambda r, i: len(seq) - 1 - pos[("wq", r, i)], cfg.h_thr)
    e("s_nop 0")
    stamp(1)
    proj_mfma(TQ)
    e(f"s_mov_b32 s61, {cfg.spin_max}")
    e("s_mov_b32 s56, 0x1000000")
    e("s_cmp_lg_u32 s3, 0")
    e("s_cbranch_scc1 L_gc_skip")
    e("L_gc:")
    e("s_waitcnt lgkmcnt(0)")
    e("s_cmp_ge_u32 s97, s56")
    e("s_cbranch_scc1 L_gc_done")
    e("s_sub_u32 s61, s61, 1")
    e("s_cbranch_scc1 L_gc_done")
    e("s_sleep 8")
    e("s_mov_b32 s97, 0")
    e("s_atomic_add s97, s[28:29], s15 glc")
    e("s_branch L_gc")
    e("L_gc_done:")
    e("v_mov_b32 v154, s97")
    e(f"ds_write_b32 v152, v154 offset:{L_FLAG+16}")
    e("L_gc_skip:")
    stamp(4)
    e(f"s_mov_b32 s15, {cfg.spin_max}")
    e("s_mov_b64 exec, 1")
    e(f"ds_add_u32 v152, v153 offset:{L_FLAG}")
    e("s_mov_b64 exec, -1")
    lds_spin("hs1", L_FLAG, "ge", 4, 152, 154, 15, sleep=0)
    e(f"ds_read_b32 v154, v152 offset:{L_FLAG+16}")
    reduce()
    e("v_readfirstlane_b32 s97, v154")
    e("v_cvt_pk_bf16_f32 v164, v24, v25")
    e("v_cvt_pk_bf16_f32 v165, v26, v27")
    e("v_min_u32 v164, -2, v164")
    e("v_min_u32 v165, -2, v165")
    gather2(164)
    e("s_mov_b32 exec_lo, 0x55555555"); e("s_mov_b32 exec_hi, 0x55555555")
    if cfg.local:
        e("s_cmp_eq_u32 s97, s57")
        e("s_cbranch_scc1 L_ql")
        e("buffer_store_dwordx4 v[164:167], v162, s[44:47], s63 offen sc1")
        e("s_branch L_qg")
        e("L_ql:")
        e("buffer_store_dwordx4 v[164:167], v162, s[44:47], s63 offen")
        e("L_qg:")
    else:
        e("buffer_store_dwordx4 v[164:167], v162, s[44:47], s63 offen sc1")
    e("s_mov_b64 exec, -1")
    stamp(2)
    e("s_cmp_lg_u32 s3, 0")
    e("s_cbranch_scc1 L_noq")
    e("v_lshl_add_u32 v157, v1, 2, v157")
    e("v_lshlrev_b32 v157, 4, v157")
    e("v_lshl_add_u32 v157, v151, 8, v157")
    e("L_qp:")
    e("buffer_load_dwordx4 v[8:11], v157, s[44:47], s62 offen sc1")
    e("buffer_load_dwordx4 v[12:15], v157, s[44:47], s62 offen offset:1024 sc1")
    e("s_waitcnt vmcnt(0)")
    e("v_max3_u32 v16, v8, v9, v10")
    e("v_max3_u32 v17, v11, v12, v13")
    e("v_max3_u32 v16, v16, v14, v15")
    e("v_max_u32 v16, v16, v17")
    e("v_cmp_eq_u32 vcc, -1, v16")
    e("s_sub_u32 s15, s15, 1")
    e("s_cbranch_scc1 L_qp_done")
    e("s_cbranch_vccnz L_qp")
    e("L_qp_done:")
    for k in range(4):
        e(f"v_lshlrev_b32 v16, 16, v{8+k}"); e(f"v_lshlrev_b32 v17, 16, v{12+k}")
        e(f"v_and_b32 v18, 0xffff0000, v{8+k}"); e(f"v_and_b32 v19, 0xffff0000, v{12+k}")
        e("v_add_f32 v16, v16, v17"); e("v_add_f32 v18, v18, v19")
        e(f"v_cvt_pk_bf16_f32 v{20+k}, v16, v18")
    e(f"ds_write_b128 v155, v[20:23] offset:{L_Q}")
    e(f"ds_write_b32 v152, v153 offset:{L_FLAG+4}")
    stamp(5)
    e("L_noq:")
    e("s_lshl_b32 s11, s3, 9")
    e("v_lshl_add_u32 v6, v0, 3, s11")
    e("v_bfe_u32 v7, v0, 1, 2")
    e("v_lshlrev_b32 v7, 6, v7")
    e("v_lshrrev_b32 v157, 5, v0")
    e("v_lshlrev_b32 v158, 3, v3")
    e("v_lshl_add_u32 v158, v157, 2, v158")
    e(f"s_mov_b32 s15, {cfg.spin_max}")
    def woload(n):
        r, i = n >> 3, n & 7
        d = WO + 16*r + 2*i
        rows = (i >> 2)*128 + (i & 3)*8
        e(f"s_add_u32 s11, s13, {rows*1024}")
        e(f"buffer_load_dwordx2 v[{d}:{d+1}], v4, s[40:43], s11 offen offset:{r*2048} nt")
    for n in range(cfg.nearly):
        woload(n)
        if n >= cfg.ho_thr: e(f"s_waitcnt vmcnt({cfg.ho_thr})")
    if cfg.nearly:
        e("s_waitcnt vmcnt(0)")
        transpose(WO, TO, lambda r, i: 99, 0, 0, cfg.nearly // 2)
    def weights():
        for k in range(4):
            e(f"ds_read_b128 v[{8+4*k}:{11+4*k}], v7 offset:{L_ML+16*k}")
        e("s_waitcnt lgkmcnt(0)")
        e("v_max3_f32 v24, v8, v10, v12")
        e("v_max3_f32 v25, v14, v16, v18")
        e("v_max3_f32 v24, v24, v20, v22")
        e("v_max_f32 v24, v24, v25")
        for w in range(8):
            e(f"v_sub_f32 v{8+2*w}, v{8+2*w}, v24")
        for w in range(8):
            e(f"v_exp_f32 v{8+2*w}, v{8+2*w}")
        e("v_mul_f32 v25, v8, v9")
        e("v_mul_f32 v26, v10, v11")
        for w in range(2, 8):
            e(f"v_fmac_f32 v{25+(w&1)}, v{8+2*w}, v{9+2*w}")
        e("v_add_f32 v25, v25, v26")
        e("v_rcp_f32 v25, v25")
        e("s_nop 0")
        for w in range(8):
            e(f"v_mul_f32 v{8+2*w}, v{8+2*w}, v25")
    lds_spin("w0", L_FLAG+12, "ge", 8, 152, 154, 15, sleep=2)
    weights()
    if cfg.wo_at:
        lds_spin("w1", L_FLAG+8, "ge", cfg.wo_at, 152, 154, 15, sleep=1)
    stamp(3)
    e("buffer_load_dword v159, v156, s[48:51], 0 offen sc1")
    for n in range(cfg.nearly, 16): woload(n)
    e("s_cmp_eq_u32 s97, s57")
    stamp(6)
    e("s_barrier")
    stamp(7)
    for w in range(8):
        e(f"ds_read_b64 v[{24+2*w}:{25+2*w}], v6 offset:{L_PART+2048*w}")
    e("s_waitcnt lgkmcnt(6)")
    e("v_pk_mul_f32 v[72:73], v[24:25], v[8:9] op_sel_hi:[1,0]")
    e("v_pk_mul_f32 v[74:75], v[26:27], v[10:11] op_sel_hi:[1,0]")
    for w in range(2, 8):
        if w % 2 == 0: e(f"s_waitcnt lgkmcnt({6-w})")
        d = 72 + 2*(w & 1)
        e(f"v_pk_fma_f32 v[{d}:{d+1}], v[{24+2*w}:{25+2*w}], v[{8+2*w}:{9+2*w}], v[{d}:{d+1}] op_sel_hi:[1,0,1]")
    e("v_pk_add_f32 v[72:73], v[72:73], v[74:75]")
    e("v_cvt_pk_bf16_f32 v72, v72, v73")
    e("v_min_u32 v72, -2, v72")
    gather4(72)
    e("s_mov_b64 exec, s[58:59]")
    if cfg.local:
        e("s_cbranch_scc1 L_ol")
        e("buffer_store_dwordx4 v[72:75], v160, s[44:47], s96 offen sc1")
        e("s_branch L_og")
        e("L_ol:")
        e("buffer_store_dwordx4 v[72:75], v160, s[44:47], s96 offen")
        e("L_og:")
    else:
        e("buffer_store_dwordx4 v[72:75], v160, s[44:47], s96 offen sc1")
    e("s_mov_b64 exec, -1")
    stamp(8)
    def opoll():
        e(f"buffer_load_dwordx4 v[{XB}:{XB+3}], v5, s[44:47], s10 offen sc1")
        e(f"buffer_load_dwordx4 v[{XB+4}:{XB+7}], v5, s[44:47], s10 offen offset:64 sc1")
    opoll()
    transpose(WO, TO, lambda r, i: 15 - (8*r + i) + 3, 99, cfg.nearly // 2, 8)
    if cfg.nearly == 16: e("s_waitcnt vmcnt(3)")
    e("L_ga:")
    e("v_cmp_gt_u32 vcc, s56, v159")
    stamp(14)
    e("s_cbranch_vccz L_opw")
    e("s_sub_u32 s15, s15, 1")
    e("s_cbranch_scc1 L_opw")
    e("s_sleep 16")
    e("buffer_load_dword v159, v156, s[48:51], 0 offen sc1")
    e("s_waitcnt vmcnt(0)")
    e("s_branch L_ga")
    e("L_op:")
    opoll()
    e("L_opw:")
    def mf(n):
        r, j = n >> 2, n & 3
        a = AC + 4*j
        src = "0" if r == 0 else f"v[{a}:{a+3}]"
        t = TO + 16*r + 4*j
        e(f"v_mfma_f32_16x16x32_bf16 v[{a}:{a+3}], v[{t}:{t+3}], v[{XB+4*r}:{XB+4*r+3}], {src}")
    e("s_waitcnt vmcnt(1)")
    if cfg.spec: mf(0)
    e(f"v_max3_u32 v40, v{XB}, v{XB+1}, v{XB+2}")
    if cfg.spec: mf(1)
    e("s_waitcnt vmcnt(0)")
    e(f"v_max3_u32 v41, v{XB+3}, v{XB+4}, v{XB+5}")
    e(f"v_max3_u32 v40, v40, v{XB+6}, v{XB+7}")
    if cfg.spec: mf(2)
    e("v_max_u32 v40, v40, v41")
    e("v_cmp_eq_u32 vcc, -1, v40")
    if cfg.spec: mf(3)
    e("s_cbranch_vccz L_op_done")
    e("s_sub_u32 s15, s15, 1")
    e("s_cbranch_scc0 L_op")
    e("L_op_done:")
    stamp(9)
    for n in range(4 if cfg.spec else 0, 8): mf(n)
    e("s_nop 4")
    for j in range(4):
        a = AC + 4*j
        e(f"ds_write_b128 v149, v[{a}:{a+3}] offset:{L_RED + 1280*j}")
    e("s_waitcnt lgkmcnt(0)")
    e("s_barrier")
    reduce()
    for k in range(4): e(f"v_min_u32 v{24+k}, -2, v{24+k}")
    e("buffer_store_dwordx4 v[24:27], v161, s[44:47], s14 offen sc1")
    stamp(10)
    e("s_cmp_lg_u32 s3, 0")
    e("s_cbranch_scc1 L_hend")
    e(f"s_mov_b32 s15, {cfg.spin_max}")
    e("L_fp:")
    for k in range(4):
        e(f"buffer_load_dwordx4 v[{8+4*k}:{11+4*k}], v155, s[44:47], s60 offen offset:{1024*k} sc1")
    e("s_waitcnt vmcnt(0)")
    e("v_max3_u32 v40, v8, v9, v10")
    e("v_max3_u32 v41, v11, v12, v13")
    e("v_max3_u32 v42, v14, v15, v16")
    e("v_max3_u32 v43, v17, v18, v19")
    e("v_max3_u32 v40, v40, v20, v21")
    e("v_max3_u32 v41, v41, v22, v23")
    e("v_max3_u32 v40, v40, v42, v43")
    e("v_max_u32 v40, v40, v41")
    e("v_cmp_eq_u32 vcc, -1, v40")
    e("s_cbranch_vccz L_fp_done")
    e("s_sub_u32 s15, s15, 1")
    e("s_cbranch_scc0 L_fp")
    e("L_fp_done:")
    stamp(11)
    e("v_pk_add_f32 v[8:9], v[8:9], v[12:13]")
    e("v_pk_add_f32 v[10:11], v[10:11], v[14:15]")
    e("v_pk_add_f32 v[16:17], v[16:17], v[20:21]")
    e("v_pk_add_f32 v[18:19], v[18:19], v[22:23]")
    e("v_pk_add_f32 v[8:9], v[8:9], v[16:17]")
    e("v_pk_add_f32 v[10:11], v[10:11], v[18:19]")
    e("s_nop 1")
    e("v_permlane32_swap_b32 v8, v10")
    e("v_permlane32_swap_b32 v9, v11")
    e("v_add_f32 v8, v8, v10")
    e("v_add_f32 v9, v9, v11")
    e("v_mov_b32 v10, v8"); e("v_mov_b32 v11, v9")
    e("s_nop 1")
    e("v_permlane16_swap_b32 v8, v10")
    e("v_permlane16_swap_b32 v9, v11")
    e("v_add_f32 v8, v8, v10")
    e("v_add_f32 v9, v9, v11")
    e("v_cvt_pk_bf16_f32 v8, v8, v9")
    e("s_mov_b32 exec_lo, 0x0000ffff"); e("s_mov_b32 exec_hi, 0x0000ffff")
    e("buffer_store_dword v8, v158, s[52:55], s12 offen")
    if cfg.stamps or lk or hk:
        e("s_waitcnt vmcnt(0)")
    stamp(12)
    if hk:
        e("s_waitcnt lgkmcnt(0)")
        e(f"s_sub_u32 s11, s{64+2*hk[1]}, s{64+2*hk[0]}")
        if len(hk) > 3:
            e(f"s_min_u32 s11, s11, {hk[3]}")
            e(f"s_sub_u32 s11, {hk[3]}, s11")
        else:
            e(f"s_max_u32 s11, s11, {cfg.hsub}")
            e(f"s_sub_u32 s11, s11, {cfg.hsub}")
        e(f"s_mul_i32 s11, s11, {hk[2]}")
        if cfg.lsel:
            reg, val = cfg.lsel.split(",")
            e(f"s_cmp_eq_u32 {reg}, {val}")
            e("s_cselect_b32 s11, s11, 0")
        e("s_min_u32 s11, s11, 20000")
        e("s_add_u32 s11, s11, 2000")
        e("L_hleak:")
        e("s_memrealtime s[100:101]")
        e("s_waitcnt lgkmcnt(0)")
        e("s_sub_u32 s12, s100, s64")
        e("s_cmp_lt_u32 s12, s11")
        e("s_cbranch_scc1 L_hleak")
    if lk:
        if cfg.lsel:
            reg, val = cfg.lsel.split(",")
            if reg == "xcc":
                e("s_getreg_b32 s11, hwreg(HW_REG_XCC_ID, 0, 3)"); reg = "s11"
            e(f"s_cmp_lg_u32 {reg}, {val}")
            e("s_cbranch_scc1 L_hend")
        e("s_memrealtime s[98:99]")
        e("s_waitcnt lgkmcnt(0)")
        e(f"s_sub_u32 s11, s{64+2*lk[1]}, s{64+2*lk[0]}")
        if len(lk) > 3:
            e(f"s_min_u32 s11, s11, {lk[3]}")
            e(f"s_sub_u32 s11, {lk[3]}, s11")
        e(f"s_mul_i32 s11, s11, {lk[2]}")
        e("s_min_u32 s11, s11, 20000")
        e("L_leak:")
        e("s_memrealtime s[100:101]")
        e("s_waitcnt lgkmcnt(0)")
        e("s_sub_u32 s12, s100, s98")
        e("s_cmp_lt_u32 s12, s11")
        e("s_cbranch_scc1 L_leak")
    e("L_hend:")
    write_stamps()
    e("L_end:")
    e("s_endpgm")

    body = "\n".join(x if x.endswith(":") else "    " + x for x in L)
    return (HDR + f"; @launch grid=(256,1,1) block=(768,1,1) lds={LDS_BYTES}\n"
        + f""".amdgcn_target "amdgcn-amd-amdhsa--gfx950"
.text
.globl {KN}_kernel
.p2align 8
.type {KN}_kernel,@function
{KN}_kernel:
""" + body + f"""
.section .rodata,"a"
.p2align 6
.amdhsa_kernel {KN}_kernel
  .amdhsa_next_free_vgpr 168
  .amdhsa_next_free_sgpr 102
  .amdhsa_accum_offset 168
  .amdhsa_group_segment_fixed_size 0
  .amdhsa_kernarg_size 64
  .amdhsa_user_sgpr_count 2
  .amdhsa_user_sgpr_kernarg_segment_ptr 1
  .amdhsa_system_sgpr_workgroup_id_x 1
.end_amdhsa_kernel
""")

if __name__ == "__main__":
    cfg = Cfg()
    out = sys.argv[1]
    for kv in sys.argv[2:]:
        k, v = kv.split("=")
        assert hasattr(cfg, k), k
        if v == "None": v = None
        elif v in ("True", "False"): v = (v == "True")
        else:
            try: v = int(v, 0)
            except ValueError: v = v.replace("+", " ")
        setattr(cfg, k, v)
    txt = gen(cfg)
    sys.path.insert(0, os.path.dirname(__file__))
    import hazcheck
    assert hazcheck.check(txt) == 0
    open(out, "w").write(txt)
```

```python
import sys, os
KN = "standalone__sliding_block_cached__sampling"

HDR = """; Kernarg layout for this problem (64 bytes, ptrs only, base s[0:1]):
;   offset   0: d_in[0] x  shape=(32, 1, 512) dtype=bfloat16 strides=(1024, 1024, 2) contiguous=True
;   offset   8: d_in[1] k_cache  shape=(32, 8, 2048, 128) dtype=bfloat16 strides=(4194304, 524288, 256, 2) contiguous=True
;   offset  16: d_in[2] v_cache  shape=(32, 8, 2048, 128) dtype=bfloat16 strides=(4194304, 524288, 256, 2) contiguous=True
;   offset  24: d_in[3] wq  shape=(512, 4096) dtype=bfloat16 strides=(8192, 2) contiguous=True
;   offset  32: d_in[4] wo  shape=(4096, 512) dtype=bfloat16 strides=(1024, 2) contiguous=True
"""

class Cfg:
    stamps = False
    nk_thr = 2
    nv_thr = 2
    nv_pre = 8
    nv_extra = 3
    h_thr = 5
    wo_at = 8
    nearly = 8
    ho_thr = 3
    rd_at = 6
    chk_at = 12
    spec = True
    spin_max = 0x40000
    xnt = ""
    boost = 0
    nb3 = 8
    nbodd = 0
    mix = 1
    wqf = 'nt'
    nqx = 0
    fwait = 0
    b3q = False
    wof = 'nt'
    xmask = None
    xfrom = 10
    xto = 99
    xlo = 1
    xhi = 3
    local = True
    leak = None
    lsel = None
    tleak = None
    hleak = None
    hsub = 0

WS_USED = 0x240000
O_WS = 0x200000
STAMP_WS = 0x10000000
L_FLAG = 0
L_ML = 256
L_Q = 512
L_PART = 1536
L_RED = L_PART + 16384
LDS_BYTES = L_RED + 16 * 1280
S_Q, S_P = 0, 4096
NST = 16

def gen(cfg):
    L = []
    e = L.append
    lk = [int(x) for x in cfg.leak.split(",")] if cfg.leak else None
    tk = [int(x) for x in cfg.tleak.split(",")] if cfg.tleak else None
    hk = [int(x) for x in cfg.hleak.split(",")] if cfg.hleak else None
    def stamp(i):
        if cfg.stamps or (lk and i in lk[:2]) or (tk and (i in tk[:2] or i == 0)) or (hk and (i in hk[:2] or i == 0)):
            e(f"s_memrealtime s[{64+2*i}:{65+2*i}]")
    def srd_c(d, size):
        e(f"s_mov_b32 s{d+2}, {size:#x}"); e(f"s_mov_b32 s{d+3}, 0x20000")
    def srd_p(d, lo):
        e(f"s_mov_b64 s[{d}:{d+1}], s[{lo}:{lo+1}]")
    def write_stamps():
        if not cfg.stamps: return
        e("s_waitcnt lgkmcnt(0) vmcnt(0)")
        e("s_sleep 64")
        srd_p(56, 30); srd_c(56, 0x20000000)
        e("s_mul_i32 s60, s2, 12"); e("s_add_u32 s60, s60, s3"); e(f"s_mul_i32 s60, s60, {NST*8}")
        e(f"s_add_u32 s60, s60, {STAMP_WS:#x}")
        e("s_mov_b64 exec, 1")
        e("v_mov_b32 v2, 0")
        for j in range(NST):
            e(f"v_mov_b32 v4, s{64+2*j}"); e(f"v_mov_b32 v5, s{65+2*j}")
            e(f"buffer_store_dwordx2 v[4:5], v2, s[56:59], s60 offen offset:{8*j}")
            e("s_waitcnt vmcnt(0)")
    def dpp(op, d, s0, s1, ctl, bank=0xf):
        if s1 is None: e(f"{op}_dpp v{d}, v{s0} {ctl} row_mask:0xf bank_mask:{bank:#x}")
        else: e(f"{op}_dpp v{d}, v{s0}, v{s1} {ctl} row_mask:0xf bank_mask:{bank:#x}")
    def lds_spin(name, off, cmp, val, vaddr, vtmp, cnt, sleep=1):
        e(f"L_{name}:")
        e(f"ds_read_b32 v{vtmp}, v{vaddr} offset:{off}")
        e("s_waitcnt lgkmcnt(0)")
        e(f"v_readfirstlane_b32 s11, v{vtmp}")
        e(f"s_sub_u32 s{cnt}, s{cnt}, 1")
        e(f"s_cbranch_scc1 L_{name}_done")
        e(f"s_cmp_{cmp}_u32 s11, {val}")
        if sleep:
            e(f"s_cbranch_scc1 L_{name}_done")
            e(f"s_sleep {sleep}")
            e(f"s_branch L_{name}")
        else:
            e(f"s_cbranch_scc0 L_{name}")
        e(f"L_{name}_done:")

    KB, VB, QB, DT, RB, CB, ACC = 8, 72, 136, 140, 144, 148, 152
    stamp(0)
    e("s_load_dwordx16 s[16:31], s[0:1], 0")
    e("v_lshrrev_b32 v1, 6, v0")
    e("s_cmp_ge_u32 s2, 256")
    e("s_cbranch_scc1 L_end")
    e("v_readfirstlane_b32 s3, v1")
    e("v_and_b32 v0, 63, v0")
    e("s_lshr_b32 s5, s2, 3")
    e("s_cmp_lt_u32 s3, 4")
    e("s_cbranch_scc1 L_helper")

    e("s_setprio 3")
    e("s_sub_u32 s6, s3, 4")
    e("s_lshl_b32 s10, s2, 19")
    e("s_lshl_b32 s11, s6, 14")
    e("s_add_u32 s10, s10, s11")
    e(f"s_add_u32 s10, s10, {1536*256}")
    e("s_lshl_b32 s11, s5, 12")
    e("s_xor_b32 s10, s10, s11")
    if cfg.mix:
        e("s_brev_b32 s11, s6"); e("s_lshr_b32 s11, s11, 18"); e("s_and_b32 s11, s11, 0x3000"); e("s_xor_b32 s10, s10, s11")
    e("v_and_b32 v3, 3, v0")
    e("v_bfe_u32 v4, v0, 2, 2")
    e("v_lshrrev_b32 v5, 4, v0")
    e("v_lshlrev_b32 v5, 6, v5")
    e("v_lshl_add_u32 v1, v4, 8, v5")
    e("v_lshl_add_u32 v1, v3, 4, v1")
    e("v_lshlrev_b32 v2, 4, v0")
    srd_c(32, 0x8000000); srd_c(36, 0x8000000)
    e("v_mov_b32 v4, 0"); e("v_mov_b32 v5, 0"); e("v_mov_b32 v6, 0"); e("v_mov_b32 v7, 0")
    tcount = [0]
    lidx = [0]
    def thr(n):
        if cfg.xmask is not None:
            if cfg.xfrom <= lidx[0] < cfg.xto:
                tcount[0] += 1
                e(f"s_waitcnt vmcnt({cfg.xhi})")
                e(f"s_cbranch_vccnz L_thr{tcount[0]}")
                e(f"s_waitcnt vmcnt({cfg.xlo})")
                e(f"L_thr{tcount[0]}:")
            else:
                e(f"s_waitcnt vmcnt({n})")
        elif cfg.boost:
            tcount[0] += 1
            e(f"s_waitcnt vmcnt({n + cfg.boost})")
            e(f"s_cbranch_vccnz L_thr{tcount[0]}")
            e(f"s_waitcnt vmcnt({n})")
            e(f"L_thr{tcount[0]}:")
        else:
            e(f"s_waitcnt vmcnt({n})")
    if cfg.boost:
        e("s_and_b32 s11, s5, 7")
        e(f"s_cmp_eq_u32 s11, {3 ^ cfg.nqx}")
        e(f"s_cselect_b32 s12, {cfg.nb3}, 0")
        if cfg.nbodd:
            e("s_getreg_b32 s11, hwreg(HW_REG_XCC_ID, 0, 1)")
            e(f"s_mul_i32 s11, s11, {cfg.nbodd}")
            e("s_add_u32 s12, s12, s11")
        e("s_cmp_lt_u32 s6, s12")
        e("s_cselect_b64 vcc, -1, 0")
    if cfg.xmask is not None:
        e("s_getreg_b32 s11, hwreg(HW_REG_XCC_ID, 0, 3)")
        e(f"s_bitcmp1_b32 {cfg.xmask}, s11")
        e("s_cselect_b64 vcc, -1, 0")
    e("s_waitcnt lgkmcnt(0)")
    srd_p(32, 18); srd_p(36, 20)
    first = 3 if cfg.nk_thr is None else cfg.nk_thr + 1
    n = 0
    for i in range(16):
        if i % 4 == 0 and i: e(f"s_xor_b32 s11, s10, {(i//4)*4096}")
        r = KB + 4*i
        e(f"buffer_load_dwordx4 v[{r}:{r+3}], v1, s[32:35], {'s11' if i >= 4 else 's10'} offen offset:{(i%4)*1024} nt")
        n += 1
        lidx[0] = n
        if n == first:
            e("s_setprio 0")
            e("ds_write_b128 v4, v[4:7]")
            e("ds_write_b128 v4, v[4:7] offset:16")
            e("s_waitcnt lgkmcnt(0)")
            e("s_barrier")
        if cfg.nk_thr is not None and n > cfg.nk_thr: thr(cfg.nk_thr)
        if n % 2 == 0 and n < 16: stamp(5 + n // 2)
    if cfg.stamps:
        for j in (13, 14, 15):
            e(f"s_mov_b64 s[{64+2*j}:{65+2*j}], 0")
    stamp(1)
    e(f"s_mov_b32 s12, {cfg.spin_max}")
    npre = min(16, cfg.nv_pre + cfg.nv_extra)
    def vload(i):
        if i % 4 == 0 or i == npre: e(f"s_xor_b32 s13, s10, {(i//4)*4096}")
        r = VB + 4*i
        e(f"buffer_load_dwordx4 v[{r}:{r+3}], v2, s[36:39], s13 offen offset:{(i%4)*1024} nt")
    for i in range(npre):
        vload(i)
        lidx[0] = 17 + i
        if cfg.nv_thr is not None and i < cfg.nv_pre: thr(cfg.nv_thr)
    stamp(2)
    e("s_mov_b32 s8, 0x05040100")
    e("s_mov_b32 s9, 0x07060302")
    e("s_mov_b32 s14, 0x3e0293ee")
    lds_spin("tq", L_FLAG+4, "eq", 1, 4, 6, 12)
    e(f"ds_read_b128 v[{QB}:{QB+3}], v2 offset:{L_Q}")
    e(f"s_waitcnt vmcnt({npre}) lgkmcnt(0)")
    stamp(3)
    D = lambda l: DT if l == 0 else KB + 4*(l-1)
    def red12(l):
        tb = (l >> 1) & 3; t2 = tb ^ 1
        dpp("v_add_f32", D(l)+tb, D(l)+(tb^2), D(l)+tb, "row_ror:8")
        dpp("v_add_f32", D(l)+t2, D(l)+(t2^2), D(l)+t2, "row_ror:8")
    def red3(l):
        tb = (l >> 1) & 3; t2 = tb ^ 1
        dpp("v_add_f32", RB + (l >> 3)*2 + (l & 1), D(l)+t2, D(l)+tb, f"row_ror:{4*((tb-t2)&3)}", 1 << tb)
    LAG = 4
    masks = ["s_mov_b32 s48, 0x000f000f", "s_mov_b32 s49, 0x000f000f", "s_mov_b32 s50, 0x00f000f0", "s_mov_b32 s51, 0x00f000f0",
             "s_mov_b32 s52, 0x0f000f00", "s_mov_b32 s53, 0x0f000f00", "s_mov_b32 s54, 0xf000f000", "s_mov_b32 s55, 0xf000f000"]
    for l in range(16 + LAG + 1):
        if l < 16:
            a = KB + 4*l
            e(f"v_mfma_f32_16x16x32_bf16 v[{D(l)}:{D(l)+3}], v[{a}:{a+3}], v[{QB}:{QB+3}], 0")
            if l < LAG: e(masks[2*l]); e(masks[2*l+1])
        if 0 <= l - LAG < 16: red12(l - LAG)
        if 0 <= l - LAG - 1 < 16: red3(l - LAG - 1)
        if l == 16 + LAG - 1: e("s_nop 0")
    e(f"v_max3_f32 v5, v{RB}, v{RB+1}, v{RB+2}")
    e(f"v_max_f32 v5, v5, v{RB+3}")
    e("s_lshl_b32 s11, s6, 3")
    e("v_lshl_add_u32 v3, v3, 6, s11")
    dpp("v_max_f32", 5, 5, 5, "row_ror:8")
    e("s_lshl_b32 s11, s6, 11")
    e("v_add_u32 v1, s11, v2")
    dpp("v_max_f32", 5, 5, 5, "row_ror:4")
    e("v_mov_b32 v6, v5")
    e("s_nop 1")
    e("v_permlane32_swap_b32 v5, v6")
    e("v_max_f32 v5, v5, v6")
    e("v_mov_b32 v6, v5")
    e("s_nop 1")
    e("v_permlane16_swap_b32 v5, v6")
    e("v_max_f32 v5, v5, v6")
    e("v_mul_f32 v6, s14, v5")
    for i in range(4):
        e(f"v_fma_f32 v{RB+i}, v{RB+i}, s14, -v6")
    for i in range(4):
        e(f"v_exp_f32 v{RB+i}, v{RB+i}")
    e("v_mov_b32 v150, 1")
    e(f"v_add_f32 v7, v{RB}, v{RB+1}")
    e(f"v_add_f32 v5, v{RB+2}, v{RB+3}")
    e("v_add_f32 v7, v7, v5")
    e(f"v_cvt_pk_bf16_f32 v{CB}, v{RB}, v{RB+1}")
    e(f"v_cvt_pk_bf16_f32 v{CB+1}, v{RB+2}, v{RB+3}")
    PM = KB
    cm = [f"v_cndmask_b32 v{PM+16*u+4*k+k}, 0, v{CB+u}, s[{48+2*k}:{49+2*k}]" for u in range(2) for k in range(4)]
    dpp("v_add_f32", 7, 7, 7, "row_ror:8")
    e(cm[0]); e(cm[1])
    dpp("v_add_f32", 7, 7, 7, "row_ror:4")
    e("v_mov_b32 v5, v7")
    e(cm[2]); e(cm[3])
    e("v_permlane32_swap_b32 v7, v5"); e("v_add_f32 v7, v7, v5"); e("v_mov_b32 v5, v7")
    e(cm[4]); e(cm[5])
    e("v_permlane16_swap_b32 v7, v5"); e("v_add_f32 v7, v7, v5")
    e(f"ds_write_b64 v3, v[6:7] offset:{L_ML}")
    e("s_mov_b64 exec, 1")
    e(f"ds_add_u32 v4, v150 offset:{L_FLAG+12}")
    e("s_mov_b64 exec, -1")
    for i in range(npre, 16):
        vload(i)
    e("s_mov_b64 exec, 1")
    e(f"ds_add_u32 v4, v150 offset:{L_FLAG+8}")
    e("s_mov_b64 exec, -1")
    e(cm[6]); e(cm[7])
    for u in range(2):
        for q4 in range(4):
            for k in range(4):
                if k == q4: continue
                dpp("v_mov_b32", PM+16*u+4*q4+k, PM+16*u+4*k+k, None, f"row_ror:{4*((q4-k)&3)}")
    stamp(4)
    for u in range(2):
        TB = KB + 32 if u == 0 else VB
        for ip in range(4):
            rem = 16 - (8*u + 2*ip + 2)
            e(f"s_waitcnt vmcnt({rem})")
            r0 = VB + 32*u + 8*ip; r1 = r0 + 4
            for w in range(4):
                e(f"v_perm_b32 v{TB+4*(2*w)+ip}, v{r1+w}, v{r0+w}, s8")
                e(f"v_perm_b32 v{TB+4*(2*w+1)+ip}, v{r1+w}, v{r0+w}, s9")
        for j in (0, 1, 4, 2, 5, 3, 6, 7):
            a = ACC + 4*(j >> 2)
            src = "0" if (u == 0 and (j & 3) == 0) else f"v[{a}:{a+3}]"
            b = PM + 16*u + 4*(j & 3)
            e(f"v_mfma_f32_16x16x32_bf16 v[{a}:{a+3}], v[{TB+4*j}:{TB+4*j+3}], v[{b}:{b+3}], {src}")
    e("s_nop 5")
    e(f"ds_write_b128 v1, v[{ACC}:{ACC+3}] offset:{L_PART}")
    e("s_nop 0")
    e(f"ds_write_b128 v1, v[{ACC+4}:{ACC+7}] offset:{L_PART+1024}")
    e("s_waitcnt lgkmcnt(0)")
    stamp(5)
    e("s_barrier")
    if cfg.stamps or tk:
        e("s_barrier")
    if tk:
        e("s_waitcnt lgkmcnt(0)")
        e(f"s_sub_u32 s11, s{64+2*tk[1]}, s{64+2*tk[0]}")
        if len(tk) > 3:
            e(f"s_min_u32 s11, s11, {tk[3]}")
            e(f"s_sub_u32 s11, {tk[3]}, s11")
        e(f"s_mul_i32 s11, s11, {tk[2]}")
        if cfg.lsel:
            reg, val = cfg.lsel.split(",")
            e(f"s_cmp_eq_u32 {reg}, {val}")
            e("s_cselect_b32 s11, s11, 0")
        e("s_min_u32 s11, s11, 20000")
        e("s_add_u32 s11, s11, 2000")
        e("L_tleak:")
        e("s_sleep 4")
        e("s_memrealtime s[100:101]")
        e("s_waitcnt lgkmcnt(0)")
        e("s_sub_u32 s12, s100, s64")
        e("s_cmp_lt_u32 s12, s11")
        e("s_cbranch_scc1 L_tleak")
    write_stamps()
    e("s_endpgm")

    WQ, WO, TQ, TO, XB = 8, 40, 72, 104, 136
    e("L_helper:")
    e("s_memrealtime s[98:99]")
    e("s_and_b32 s4, s2, 7")
    e("s_lshl_b32 s62, s2, 13")
    e("s_lshr_b32 s6, s5, 3")
    e("s_and_b32 s7, s5, 7")
    e("s_and_b32 s59, s6, 1")
    e("s_lshr_b32 s58, s6, 1")
    e("v_lshrrev_b32 v1, 4, v0")
    e("v_and_b32 v3, 15, v0")
    e("v_lshlrev_b32 v7, 4, v1")
    e("v_lshl_add_u32 v5, v3, 10, v7")
    e("v_lshlrev_b32 v6, 16, v1")
    e("v_lshl_add_u32 v6, v3, 3, v6")
    e("s_lshl_b32 s63, s58, 14"); e("s_lshl_b32 s11, s59, 9"); e("s_add_u32 s63, s63, s11")
    e("s_lshl_b32 s10, s3, 7"); e("s_add_u32 s63, s63, s10"); e("s_add_u32 s10, s10, s11")
    e("s_lshl_b32 s12, s10, 12")
    e("s_lshl_b32 s11, s4, 10"); e("s_add_u32 s12, s12, s11")
    e("s_lshl_b32 s14, s7, 7"); e(f"s_xor_b32 s11, s14, {cfg.nqx << 7}"); e("s_add_u32 s12, s12, s11")
    srd_c(32, 0x8000); srd_c(36, 0x400000); srd_c(44, WS_USED); srd_c(48, 256)
    for r in range(144, 148): e(f"v_mov_b32 v{r}, -1")
    e("v_lshlrev_b32 v155, 4, v0")
    e("s_getreg_b32 s60, hwreg(HW_REG_XCC_ID, 0, 3)")
    e("s_lshl_b32 s96, s4, 5"); e("s_add_u32 s96, s96, s5"); e("s_lshl_b32 s96, s96, 10"); e(f"s_add_u32 s96, s96, {O_WS}")
    e(f"s_mov_b32 s56, {cfg.spin_max}")
    e("v_mov_b32 v152, 0"); e("v_mov_b32 v153, 1")
    e("s_or_b32 s11, s60, 0x100")
    e("v_mov_b32 v159, s11")
    e("s_cmp_lg_u32 s3, 0")
    e("s_waitcnt lgkmcnt(0)")
    srd_p(32, 16); srd_p(36, 22); srd_p(44, 30); srd_p(48, 28)
    e("s_cbranch_scc1 L_noarr")
    e("s_cmp_lg_u32 s2, 0")
    e("s_cbranch_scc1 L_nolead")
    e("v_mov_b32 v158, s98")
    e("s_mov_b64 exec, 1")
    e("buffer_store_dwordx2 v[158:159], v152, s[48:51], 0 offen sc1")
    e("s_mov_b64 exec, -1")
    e("L_nolead:")
    e("buffer_store_dwordx4 v[144:147], v155, s[44:47], s96 offen sc1")
    e("L_noarr:")
    seq = [("x", 0, 0), ("x", 1, 0)] + [("wq", r, i) for r in range(2) for i in range(8)]
    pos = {x: n for n, x in enumerate(seq)}
    assert cfg.chk_at - cfg.rd_at >= cfg.h_thr or cfg.chk_at == 17
    for n, (k, r, i) in enumerate(seq):
        if k == "wq":
            d = WQ + 16*r + 2*i
            if r or i: e(f"s_add_u32 s11, s12, {(r*32+i)*8192}")
            e(f"buffer_load_dwordx2 v[{d}:{d+1}], v6, s[36:39], {'s11' if (r or i) else 's12'} offen {cfg.wqf}")
        elif k == "x":
            e(f"buffer_load_dwordx4 v[{XB+4*r}:{XB+4*r+3}], v5, s[32:35], s63 offen offset:{64*r} {cfg.xnt}")
        if n == cfg.h_thr:
            e("s_setprio 3")
            e("s_barrier")
        if n >= cfg.h_thr and n < len(seq) - 1: e(f"s_waitcnt vmcnt({cfg.h_thr})")
        if n == cfg.rd_at:
            e("s_cmp_lg_u32 s3, 0")
            e("s_cbranch_scc1 L_nord")
            e("buffer_load_dwordx2 v[158:159], v152, s[48:51], 0 offen sc1")
            e("L_nord:")
        if n == cfg.chk_at:
            e("s_cmp_lg_u32 s3, 0")
            e("s_cbranch_scc1 L_nochk")
            e(f"s_waitcnt vmcnt({cfg.chk_at - cfg.rd_at})")
            e("L_gc:")
            e("v_readfirstlane_b32 s11, v159")
            e("s_cmp_lg_u32 s11, 0")
            e("s_cbranch_scc1 L_gc_done")
            e("s_sub_u32 s56, s56, 1")
            e("s_cbranch_scc1 L_gc_done")
            e("buffer_load_dwordx2 v[158:159], v152, s[48:51], 0 offen sc1")
            e("s_waitcnt vmcnt(0)")
            e("s_branch L_gc")
            e("L_gc_done:")
            e("s_add_u32 s11, s11, s2"); e("s_and_b32 s11, s11, 7")
            e("s_cmp_eq_u32 s11, s60")
            e(f"s_cselect_b32 s11, {1 if cfg.local else 0}, 0")
            e("v_mov_b32 v159, s11")
            e(f"ds_write_b64 v152, v[158:159] offset:{L_FLAG+16}")
            if cfg.local: e("s_cbranch_scc1 L_nochk")
            e("s_mov_b64 exec, 1")
            e("buffer_store_dword v153, v152, s[48:51], 0 offen offset:128 sc1")
            e("s_mov_b64 exec, -1")
            e("L_nochk:")
    if cfg.stamps:
        for j in range(1, NST):
            e(f"s_mov_b64 s[{64+2*j}:{65+2*j}], 0")
    stamp(13)
    e("s_mov_b32 s8, 0x05040100")
    e("s_mov_b32 s9, 0x07060302")
    srd_p(52, 26); srd_c(52, 0x8000)
    srd_p(40, 24); srd_c(40, 0x400000)
    e("v_and_b32 v4, 1, v1"); e("v_lshlrev_b32 v4, 8, v4")
    e("v_lshrrev_b32 v2, 1, v1"); e("v_add_u32 v4, v4, v2")
    e("v_lshlrev_b32 v4, 10, v4"); e("v_lshl_add_u32 v4, v3, 3, v4")
    e("s_lshl_b32 s13, s4, 19"); e("s_add_u32 s13, s13, s14")
    e("s_lshl_b32 s11, s3, 15"); e("s_add_u32 s13, s13, s11")
    e("s_lshl_b32 s11, s59, 12"); e("s_add_u32 s13, s13, s11")
    e("s_lshl_b32 s11, s4, 15"); e("s_add_u32 s10, s63, s11"); e(f"s_add_u32 s10, s10, {O_WS}")
    e("s_lshl_b32 s63, s58, 7"); e("s_add_u32 s63, s63, s4"); e("s_lshl_b32 s63, s63, 13")
    e("s_lshl_b32 s11, s3, 18"); e("s_add_u32 s63, s63, s11")
    e("s_lshl_b32 s11, s59, 11"); e("s_add_u32 s63, s63, s11")
    e("s_lshl_b32 s11, s7, 8"); e(f"s_xor_b32 s11, s11, {cfg.nqx << 8}"); e("s_add_u32 s63, s63, s11")
    e("v_lshlrev_b32 v162, 16, v1"); e("v_lshl_add_u32 v162, v3, 4, v162")
    e("s_lshl_b32 s11, s3, 8"); e("s_add_u32 s96, s96, s11")
    e("v_lshrrev_b32 v163, 5, v0")
    e("v_lshlrev_b32 v160, 2, v0")
    e("s_lshl_b32 s12, s6, 3"); e("s_add_u32 s12, s12, s4"); e("s_lshl_b32 s12, s12, 10"); e("s_add_u32 s12, s12, s14")
    e("s_lshl_b32 s14, s58, 7"); e("s_lshr_b32 s11, s3, 1"); e("s_lshl_b32 s11, s11, 6"); e("s_add_u32 s14, s14, s11")
    e("s_lshl_b32 s11, s7, 3"); e("s_add_u32 s14, s14, s11")
    e("s_and_b32 s11, s3, 1"); e("s_lshl_b32 s11, s11, 2"); e("s_add_u32 s14, s14, s11")
    e("s_lshl_b32 s14, s14, 13")
    e("s_lshl_b32 s11, s4, 1"); e("s_add_u32 s11, s11, s59"); e("s_lshl_b32 s11, s11, 8"); e("s_add_u32 s14, s14, s11")
    e(f"s_add_u32 s14, s14, {S_P}")
    e("v_lshlrev_b32 v161, 13, v1"); e("v_lshl_add_u32 v161, v3, 4, v161")
    e("s_mov_b32 s58, 0x11111111"); e("s_mov_b32 s59, 0x11111111")
    e("v_mul_u32_u24 v149, 288, v1")
    e("v_lshl_add_u32 v149, v3, 4, v149")
    e("s_mul_i32 s11, s3, 5120")
    e("v_add_u32 v149, s11, v149")
    e("v_bfe_u32 v157, v0, 2, 2")
    e("v_mul_u32_u24 v150, 288, v157")
    e("v_add_u32 v150, v150, v7")
    e("v_and_b32 v151, 3, v0")
    e("v_lshl_add_u32 v150, v151, 2, v150")
    e("s_lshl_b32 s11, s3, 6"); e(f"s_add_u32 s11, s11, {L_RED}")
    e("v_add_u32 v150, s11, v150")

    def transpose(W, T, remf, thr, lo=0, hi=8):
        for r in range(2):
            for ip in range(4):
                if not (lo <= 4*r + ip < hi): continue
                rem = remf(r, 2*ip + 1)
                if rem <= thr: e(f"s_waitcnt vmcnt({rem})")
                r0 = W + 16*r + 4*ip; r1 = r0 + 2
                for w in range(2):
                    e(f"v_perm_b32 v{T+16*r+4*(2*w)+ip}, v{r1+w}, v{r0+w}, s8")
                    e(f"v_perm_b32 v{T+16*r+4*(2*w+1)+ip}, v{r1+w}, v{r0+w}, s9")
    AC = 8
    def proj_mfma(T):
        for r in range(2):
            for j in range(4):
                a = AC + 4*j
                src = "0" if r == 0 else f"v[{a}:{a+3}]"
                t = T + 16*r + 4*j
                e(f"v_mfma_f32_16x16x32_bf16 v[{a}:{a+3}], v[{t}:{t+3}], v[{XB+4*r}:{XB+4*r+3}], {src}")
        e("s_nop 4")
        for j in range(4):
            a = AC + 4*j
            e(f"ds_write_b128 v149, v[{a}:{a+3}] offset:{L_RED + 1280*j}")
    def reduce():
        for w in range(4):
            for jp in range(2):
                e(f"ds_read2st64_b32 v[{24+4*w+2*jp}:{25+4*w+2*jp}], v150 offset0:{5*(4*w+2*jp)} offset1:{5*(4*w+2*jp+1)}")
        e("s_waitcnt lgkmcnt(4)")
        e("v_pk_add_f32 v[24:25], v[24:25], v[28:29]")
        e("v_pk_add_f32 v[26:27], v[26:27], v[30:31]")
        e("s_waitcnt lgkmcnt(2)")
        e("v_pk_add_f32 v[24:25], v[24:25], v[32:33]")
        e("v_pk_add_f32 v[26:27], v[26:27], v[34:35]")
        e("s_waitcnt lgkmcnt(0)")
        e("v_pk_add_f32 v[24:25], v[24:25], v[36:37]")
        e("v_pk_add_f32 v[26:27], v[26:27], v[38:39]")
    def gather4(r):
        e("s_nop 1")
        dpp("v_mov_b32", r+1, r, None, "quad_perm:[1,1,1,1]")
        dpp("v_mov_b32", r+2, r, None, "quad_perm:[2,2,2,2]")
        dpp("v_mov_b32", r+3, r, None, "quad_perm:[3,3,3,3]")
    def gather2(r):
        e("s_nop 1")
        dpp("v_mov_b32", r+2, r, None, "quad_perm:[1,1,3,3]")
        dpp("v_mov_b32", r+3, r+1, None, "quad_perm:[1,1,3,3]")

    transpose(WQ, TQ, lambda r, i: len(seq) - 1 - pos[("wq", r, i)], cfg.h_thr)
    e("s_nop 0")
    stamp(1)
    proj_mfma(TQ)
    stamp(4)
    e(f"s_mov_b32 s15, {cfg.spin_max}")
    e("s_waitcnt vmcnt(0)")
    e("s_mov_b64 exec, 1")
    e(f"ds_add_u32 v152, v153 offset:{L_FLAG}")
    e("s_mov_b64 exec, -1")
    e("v_mov_b32 v148, 0xff")
    lds_spin("hs1", L_FLAG, "ge", 4, 152, 154, 15, sleep=0)
    e(f"ds_read_b64 v[158:159], v152 offset:{L_FLAG+16}")
    reduce()
    e("v_readfirstlane_b32 s101, v158")
    e("v_readfirstlane_b32 s97, v159")
    e("s_and_b32 s98, s101, 0xff"); e("s_bfe_u32 s99, s101, 0x80008"); e("s_bfe_u32 s100, s101, 0x80010"); e("s_lshr_b32 s101, s101, 24")
    def tag(d, r):
        for k in range(4): e(f"v_bfi_b32 v{d+k}, v148, s{98+k}, v{r+k}")
    def untag(r, k, acc):
        for c in range(4):
            e(f"v_xor_b32 v{r+c}, s{98+c}, v{r+c}")
        if k == 0: e(f"v_or3_b32 v{acc}, v{r}, v{r+1}, v{r+2}"); e(f"v_or_b32 v{acc}, v{acc}, v{r+3}")
        else: e(f"v_or3_b32 v{acc}, v{acc}, v{r}, v{r+1}"); e(f"v_or3_b32 v{acc}, v{acc}, v{r+2}, v{r+3}")
    tag(164, 24)
    e("s_cmp_eq_u32 s97, 1")
    e("s_cbranch_scc1 L_ql")
    e("buffer_store_dwordx4 v[164:167], v162, s[44:47], s63 offen sc1")
    e("s_branch L_qg")
    e("L_ql:")
    e("buffer_store_dwordx4 v[164:167], v162, s[44:47], s63 offen")
    e("L_qg:")
    stamp(2)
    def woload(n):
        r, i = n >> 3, n & 7
        d = WO + 16*r + 2*i
        rows = (i >> 2)*128 + (i & 3)*8
        e(f"s_add_u32 s11, s13, {rows*1024}")
        e(f"buffer_load_dwordx2 v[{d}:{d+1}], v4, s[40:43], s11 offen offset:{r*2048} {cfg.wof}")
    for n in range(cfg.nearly):
        woload(n)
        if n >= cfg.ho_thr and n < cfg.nearly - 1: e(f"s_waitcnt vmcnt({cfg.ho_thr})")
    e("s_cmp_lg_u32 s3, 0")
    e("s_cbranch_scc1 L_noq")
    e("v_lshl_add_u32 v157, v1, 2, v157")
    e("v_lshlrev_b32 v157, 5, v157")
    e("v_lshl_add_u32 v157, v151, 9, v157")
    e("L_qp:")
    e("buffer_load_dwordx4 v[8:11], v157, s[44:47], s62 offen sc1")
    e("buffer_load_dwordx4 v[12:15], v157, s[44:47], s62 offen offset:16 sc1")
    e("buffer_load_dwordx4 v[16:19], v157, s[44:47], s62 offen offset:2048 sc1")
    e("buffer_load_dwordx4 v[20:23], v157, s[44:47], s62 offen offset:2064 sc1")
    e("s_waitcnt vmcnt(0)")
    for k in range(4): untag(8 + 4*k, k, 28)
    e("v_and_b32 v28, v28, v148")
    e("v_cmp_ne_u32 vcc, 0, v28")
    e("s_cbranch_vccz L_qp_done")
    e("s_sub_u32 s15, s15, 1")
    e("s_cbranch_scc0 L_qp")
    e("L_qp_done:")
    e("buffer_load_dword v32, v152, s[48:51], 0 offen offset:128 sc1")
    for k in range(4):
        e(f"v_pk_add_f32 v[{8+2*k}:{9+2*k}], v[{8+2*k}:{9+2*k}], v[{16+2*k}:{17+2*k}]")
    for k in range(4):
        e(f"v_cvt_pk_bf16_f32 v{28+k}, v{8+2*k}, v{9+2*k}")
    e(f"ds_write_b128 v155, v[28:31] offset:{L_Q}")
    e(f"ds_write_b32 v152, v153 offset:{L_FLAG+4}")
    stamp(5)
    e("L_noq:")
    e("s_lshl_b32 s11, s3, 9")
    e("v_lshl_add_u32 v6, v0, 3, s11")
    e("v_bfe_u32 v7, v0, 1, 2")
    e("v_lshlrev_b32 v7, 6, v7")
    e("v_lshlrev_b32 v158, 3, v3")
    e("v_lshl_add_u32 v158, v163, 2, v158")
    e(f"s_add_u32 s62, s62, {S_P}")
    e(f"s_mov_b32 s15, {cfg.spin_max}")
    if cfg.nearly:
        e("s_waitcnt vmcnt(0)")
        transpose(WO, TO, lambda r, i: 99, 0, 0, cfg.nearly // 2)
    e("s_cmp_lg_u32 s3, 0")
    e("s_cbranch_scc1 L_nov")
    e("s_waitcnt vmcnt(0)")
    e("v_add_u32 v32, 1, v32")
    e(f"ds_write_b32 v152, v32 offset:{L_FLAG+24}")
    e("L_nov:")
    lds_spin("vd", L_FLAG+24, "lg", 0, 152, 154, 15, sleep=2)
    e("s_mov_b32 s57, s11")
    e("s_cmp_eq_u32 s57, 1")
    e("s_cbranch_scc1 L_nore")
    e("buffer_store_dwordx4 v[164:167], v162, s[44:47], s63 offen sc1")
    e("L_nore:")
    def weights():
        for k in range(4):
            e(f"ds_read_b128 v[{8+4*k}:{11+4*k}], v7 offset:{L_ML+16*k}")
        e("s_waitcnt lgkmcnt(0)")
        e("v_max3_f32 v24, v8, v10, v12")
        e("v_max3_f32 v25, v14, v16, v18")
        e("v_max3_f32 v24, v24, v20, v22")
        e("v_max_f32 v24, v24, v25")
        for w in range(8):
            e(f"v_sub_f32 v{8+2*w}, v{8+2*w}, v24")
        for w in range(8):
            e(f"v_exp_f32 v{8+2*w}, v{8+2*w}")
        e("v_mul_f32 v25, v8, v9")
        e("v_mul_f32 v26, v10, v11")
        for w in range(2, 8):
            e(f"v_fmac_f32 v{25+(w&1)}, v{8+2*w}, v{9+2*w}")
        e("v_add_f32 v25, v25, v26")
        e("v_rcp_f32 v25, v25")
        e("s_nop 0")
        for w in range(8):
            e(f"v_mul_f32 v{8+2*w}, v{8+2*w}, v25")
    lds_spin("w0", L_FLAG+12, "ge", 8, 152, 154, 15, sleep=2)
    weights()
    if cfg.wo_at:
        lds_spin("w1", L_FLAG+8, "ge", cfg.wo_at, 152, 154, 15, sleep=1)
    stamp(3)
    for n in range(cfg.nearly, 16): woload(n)
    e("s_cmp_eq_u32 s57, 1")
    stamp(6)
    e("s_barrier")
    stamp(7)
    for w in range(8):
        e(f"ds_read_b64 v[{24+2*w}:{25+2*w}], v6 offset:{L_PART+2048*w}")
    e("s_waitcnt lgkmcnt(6)")
    e("v_pk_mul_f32 v[72:73], v[24:25], v[8:9] op_sel_hi:[1,0]")
    e("v_pk_mul_f32 v[74:75], v[26:27], v[10:11] op_sel_hi:[1,0]")
    for w in range(2, 8):
        if w % 2 == 0: e(f"s_waitcnt lgkmcnt({6-w})")
        d = 72 + 2*(w & 1)
        e(f"v_pk_fma_f32 v[{d}:{d+1}], v[{24+2*w}:{25+2*w}], v[{8+2*w}:{9+2*w}], v[{d}:{d+1}] op_sel_hi:[1,0,1]")
    e("v_pk_add_f32 v[72:73], v[72:73], v[74:75]")
    e("v_cvt_pk_bf16_f32 v72, v72, v73")
    e("v_min_u32 v72, -2, v72")
    gather4(72)
    e("s_mov_b64 exec, s[58:59]")
    if cfg.local:
        e("s_cbranch_scc1 L_ol")
        e("buffer_store_dwordx4 v[72:75], v160, s[44:47], s96 offen sc1")
        e("s_branch L_og")
        e("L_ol:")
        e("buffer_store_dwordx4 v[72:75], v160, s[44:47], s96 offen")
        e("L_og:")
    else:
        e("buffer_store_dwordx4 v[72:75], v160, s[44:47], s96 offen sc1")
    e("s_mov_b64 exec, -1")
    stamp(8)
    def opoll():
        e(f"buffer_load_dwordx4 v[{XB}:{XB+3}], v5, s[44:47], s10 offen sc1")
        e(f"buffer_load_dwordx4 v[{XB+4}:{XB+7}], v5, s[44:47], s10 offen offset:64 sc1")
    opoll()
    transpose(WO, TO, lambda r, i: 15 - (8*r + i) + 3, 99, cfg.nearly // 2, 8)
    stamp(14)
    e("s_branch L_opw")
    e("L_op:")
    opoll()
    e("L_opw:")
    def mf(n):
        r, j = n >> 2, n & 3
        a = AC + 4*j
        src = "0" if r == 0 else f"v[{a}:{a+3}]"
        t = TO + 16*r + 4*j
        e(f"v_mfma_f32_16x16x32_bf16 v[{a}:{a+3}], v[{t}:{t+3}], v[{XB+4*r}:{XB+4*r+3}], {src}")
    e("s_waitcnt vmcnt(1)")
    if cfg.spec: mf(0)
    e(f"v_max3_u32 v40, v{XB}, v{XB+1}, v{XB+2}")
    if cfg.spec: mf(1)
    e("s_waitcnt vmcnt(0)")
    e(f"v_max3_u32 v41, v{XB+3}, v{XB+4}, v{XB+5}")
    e(f"v_max3_u32 v40, v40, v{XB+6}, v{XB+7}")
    if cfg.spec: mf(2)
    e("v_max_u32 v40, v40, v41")
    e("v_cmp_eq_u32 vcc, -1, v40")
    if cfg.spec: mf(3)
    e("s_cbranch_vccz L_op_done")
    e("s_sub_u32 s15, s15, 1")
    e("s_cbranch_scc0 L_op")
    e("L_op_done:")
    stamp(9)
    for n in range(4 if cfg.spec else 0, 8): mf(n)
    e("s_nop 4")
    for j in range(4):
        a = AC + 4*j
        e(f"ds_write_b128 v149, v[{a}:{a+3}] offset:{L_RED + 1280*j}")
    e("s_waitcnt lgkmcnt(0)")
    e("s_barrier")
    reduce()
    tag(24, 24)
    e("buffer_store_dwordx4 v[24:27], v161, s[44:47], s14 offen sc1")
    stamp(10)
    e("s_cmp_lg_u32 s3, 0")
    e("s_cbranch_scc1 L_hend")
    e(f"s_mov_b32 s15, {cfg.spin_max}")
    if cfg.fwait: e("s_waitcnt vmcnt(0)")
    e("L_fp:")
    for k in range(4):
        e(f"buffer_load_dwordx4 v[{8+4*k}:{11+4*k}], v155, s[44:47], s62 offen offset:{1024*k} sc1")
    for k in range(4):
        e(f"s_waitcnt vmcnt({3-k})")
        untag(8 + 4*k, k, 40)
        if k:
            e(f"v_pk_add_f32 v[8:9], v[8:9], v[{8+4*k}:{9+4*k}]"); e(f"v_pk_add_f32 v[10:11], v[10:11], v[{10+4*k}:{11+4*k}]")
    e("v_and_b32 v40, v40, v148")
    e("v_cmp_ne_u32 vcc, 0, v40")
    e("s_cbranch_vccz L_fp_done")
    e("s_sub_u32 s15, s15, 1")
    e("s_cbranch_scc0 L_fp")
    e("L_fp_done:")
    stamp(11)
    e("v_permlane32_swap_b32 v8, v10")
    e("v_permlane32_swap_b32 v9, v11")
    e("v_add_f32 v8, v8, v10")
    e("v_add_f32 v9, v9, v11")
    e("v_mov_b32 v10, v8"); e("v_mov_b32 v11, v9")
    e("s_nop 1")
    e("v_permlane16_swap_b32 v8, v10")
    e("v_permlane16_swap_b32 v9, v11")
    e("v_add_f32 v8, v8, v10")
    e("v_add_f32 v9, v9, v11")
    e("v_cvt_pk_bf16_f32 v8, v8, v9")
    e("s_mov_b32 exec_lo, 0x0000ffff"); e("s_mov_b32 exec_hi, 0x0000ffff")
    e("buffer_store_dword v8, v158, s[52:55], s12 offen")
    if cfg.stamps or lk or hk:
        e("s_waitcnt vmcnt(0)")
    stamp(12)
    if hk:
        e("s_waitcnt lgkmcnt(0)")
        e(f"s_sub_u32 s11, s{64+2*hk[1]}, s{64+2*hk[0]}")
        if len(hk) > 3:
            e(f"s_min_u32 s11, s11, {hk[3]}")
            e(f"s_sub_u32 s11, {hk[3]}, s11")
        else:
            e(f"s_max_u32 s11, s11, {cfg.hsub}")
            e(f"s_sub_u32 s11, s11, {cfg.hsub}")
        e(f"s_mul_i32 s11, s11, {hk[2]}")
        if cfg.lsel:
            reg, val = cfg.lsel.split(",")
            e(f"s_cmp_eq_u32 {reg}, {val}")
            e("s_cselect_b32 s11, s11, 0")
        e("s_min_u32 s11, s11, 20000")
        e("s_add_u32 s11, s11, 2000")
        e("L_hleak:")
        e("s_memrealtime s[100:101]")
        e("s_waitcnt lgkmcnt(0)")
        e("s_sub_u32 s12, s100, s64")
        e("s_cmp_lt_u32 s12, s11")
        e("s_cbranch_scc1 L_hleak")
    if lk:
        if cfg.lsel:
            reg, val = cfg.lsel.split(",")
            if reg == "xcc":
                e("s_getreg_b32 s11, hwreg(HW_REG_XCC_ID, 0, 3)"); reg = "s11"
            e(f"s_cmp_lg_u32 {reg}, {val}")
            e("s_cbranch_scc1 L_hend")
        e("s_memrealtime s[32:33]")
        e("s_waitcnt lgkmcnt(0)")
        e(f"s_sub_u32 s11, s{64+2*lk[1]}, s{64+2*lk[0]}")
        if len(lk) > 3:
            e(f"s_min_u32 s11, s11, {lk[3]}")
            e(f"s_sub_u32 s11, {lk[3]}, s11")
        e(f"s_mul_i32 s11, s11, {lk[2]}")
        e("s_min_u32 s11, s11, 20000")
        e("L_leak:")
        e("s_memrealtime s[100:101]")
        e("s_waitcnt lgkmcnt(0)")
        e("s_sub_u32 s12, s100, s32")
        e("s_cmp_lt_u32 s12, s11")
        e("s_cbranch_scc1 L_leak")
    e("L_hend:")
    write_stamps()
    e("L_end:")
    e("s_endpgm")

    body = "\n".join(x if x.endswith(":") else "    " + x for x in L)
    return (HDR + f"; @launch grid=(256,1,1) block=(768,1,1) lds={LDS_BYTES}\n"
        + f""".amdgcn_target "amdgcn-amd-amdhsa--gfx950"
.text
.globl {KN}_kernel
.p2align 8
.type {KN}_kernel,@function
{KN}_kernel:
""" + body + f"""
.section .rodata,"a"
.p2align 6
.amdhsa_kernel {KN}_kernel
  .amdhsa_next_free_vgpr 168
  .amdhsa_next_free_sgpr 102
  .amdhsa_accum_offset 168
  .amdhsa_group_segment_fixed_size 0
  .amdhsa_kernarg_size 64
  .amdhsa_user_sgpr_count 2
  .amdhsa_user_sgpr_kernarg_segment_ptr 1
  .amdhsa_system_sgpr_workgroup_id_x 1
.end_amdhsa_kernel
""")

if __name__ == "__main__":
    cfg = Cfg()
    out = sys.argv[1]
    for kv in sys.argv[2:]:
        k, v = kv.split("=")
        assert hasattr(cfg, k), k
        if v == "None": v = None
        elif v in ("True", "False"): v = (v == "True")
        else:
            try: v = int(v, 0)
            except ValueError: v = v.replace("+", " ")
        setattr(cfg, k, v)
    txt = gen(cfg)
    sys.path.insert(0, os.path.dirname(__file__))
    import hazcheck
    assert hazcheck.check(txt) == 0
    open(out, "w").write(txt)
```

```python
import sys, os
KN = "standalone__sliding_block_cached__sampling"

HDR = """; Kernarg layout for this problem (64 bytes, ptrs only, base s[0:1]):
;   offset  24: d_in[3] wq  shape=(512, 4096) dtype=bfloat16 strides=(8192, 2) contiguous=True
"""
DOC = """; One fused kernel, one workgroup per (batch b = wg>>3, kv head hkv = wg&7), one workgroup per CU.
;   waves 8..11 (H): one 16 x 64 x 256 tile of q = x wq, then one such tile of out = o wo, and all hand-offs.
"""

class Cfg:
    nthr = 2
    xfrom = 3
    xto = 10
    npre = 7
    nfree = 5
    h_thr = 5
    hx = 2
    rd_at = 6
    race_at = 11
    chk_at = 12
    nearly = 4
    opat = 5
    nqx = 4
    spin = 0x40000

Q_WS = 0x0
O_WS = 0x80000
A_WS = 0xc0000
PR_WS = 0xd0000
P_WS = 0x100000
SLOW = 0x200000
F_WS = 0x2c0000
WS_USED = 0x2c2000
L_FLAG = 0
L_ML = 256
L_Q = 512
L_PART = 1536
L_RED = L_PART + 16384
LDS_BYTES = L_RED + 16 * 1280

def gen(cfg):
    L = []
    e = L.append
    c = lambda t: L.append("; " + t)
    def srd_c(d, size):
        e(f"s_mov_b32 s{d+2}, {size:#x}"); e(f"s_mov_b32 s{d+3}, 0x20000")
    def srd_p(d, lo):
        e(f"s_mov_b64 s[{d}:{d+1}], s[{lo}:{lo+1}]")
    def dpp(op, d, s0, s1, ctl, bank=0xf):
        if s1 is None: e(f"{op}_dpp v{d}, v{s0} {ctl} row_mask:0xf bank_mask:{bank:#x}")
        else: e(f"{op}_dpp v{d}, v{s0}, v{s1} {ctl} row_mask:0xf bank_mask:{bank:#x}")
    def lds_spin(name, off, val, vaddr, vtmp, sleep):
        e(f"L_{name}:")
        e(f"ds_read_b32 v{vtmp}, v{vaddr} offset:{off}")
        e("s_waitcnt lgkmcnt(0)")
        e(f"v_readfirstlane_b32 s11, v{vtmp}")
        e(f"s_cmp_ge_u32 s11, {val}")
        e(f"s_cbranch_scc1 L_{name}_done")
        if sleep: e(f"s_sleep {sleep}")
        retry(f"L_{name}")
        e(f"L_{name}_done:")
    def retry(lbl):
        e("s_sub_u32 s15, s15, 1")
        e(f"s_cbranch_scc0 {lbl}")
        e("s_endpgm")
    def lane0(ins):
        e("s_mov_b64 exec, 1")
        for x in ins: e(x)
        e("s_mov_b64 exec, -1")

    KB, VB, QB, DT, RB, CB, ACC = 8, 72, 136, 140, 144, 148, 152
    e("s_load_dwordx16 s[16:31], s[0:1], 0        ; x k v wq wo out debug ws")
    e("v_lshrrev_b32 v1, 6, v0")
    e("s_cmp_ge_u32 s2, 256")
    e("s_cbranch_scc1 L_end")
    e("v_readfirstlane_b32 s6, v1")
    e("v_and_b32 v0, 63, v0                       ; lane")
    e("s_lshr_b32 s5, s2, 3                       ; b")
    e("s_cmp_ge_u32 s6, 8")
    e("s_cbranch_scc1 L_helper")

    c("================= T waves =================")
    c("16 KB of keys per wave; the start inside the window is spread over the memory interleave classes")
    e("s_lshl_b32 s10, s2, 19")
    e("s_lshl_b32 s11, s6, 14")
    e("s_add_u32 s10, s10, s11")
    e(f"s_add_u32 s10, s10, {1536*256}")
    e("s_lshl_b32 s11, s5, 12")
    e("s_xor_b32 s10, s10, s11")
    e("s_brev_b32 s11, s6"); e("s_lshr_b32 s11, s11, 18"); e("s_and_b32 s11, s11, 0x3000"); e("s_xor_b32 s10, s10, s11")
    c("K lane offset: key (l>>2)&3, chunk 4*(l>>4) + (l&3); V lane offset: linear")
    e("v_and_b32 v3, 3, v0")
    e("v_bfe_u32 v4, v0, 2, 2")
    e("v_lshrrev_b32 v5, 4, v0")
    e("v_lshlrev_b32 v5, 6, v5")
    e("v_lshl_add_u32 v1, v4, 8, v5")
    e("v_lshl_add_u32 v1, v3, 4, v1")
    e("v_lshlrev_b32 v2, 4, v0")
    srd_c(32, 0x8000000); srd_c(36, 0x8000000)
    e("v_mov_b32 v4, 0"); e("v_mov_b32 v5, 0"); e("v_mov_b32 v6, 0"); e("v_mov_b32 v7, 0")
    e("s_getreg_b32 s11, hwreg(HW_REG_XCC_ID, 0, 1)")
    e("s_cmp_lg_u32 s11, 0")
    e("s_cselect_b64 vcc, -1, 0")
    e("s_waitcnt lgkmcnt(0)")
    srd_p(32, 18); srd_p(36, 20)
    def thr(n):
        e(f"s_waitcnt vmcnt({cfg.nthr})")
        if cfg.xfrom <= n < cfg.xto:
            e(f"s_cbranch_vccnz L_thr{n}")
            e(f"s_waitcnt vmcnt({cfg.nthr-1})")
            e(f"L_thr{n}:")
    for i in range(16):
        if i % 4 == 0 and i: e(f"s_xor_b32 s11, s10, {(i//4)*4096}")
        r = KB + 4*i
        e(f"buffer_load_dwordx4 v[{r}:{r+3}], v1, s[32:35], {'s11' if i >= 4 else 's10'} offen offset:{(i%4)*1024} nt")
        if i == cfg.nthr:
            e("ds_write_b128 v4, v[4:7]")
            e("ds_write_b128 v4, v[4:7] offset:16")
            e("s_waitcnt lgkmcnt(0)")
            e("s_barrier")
        if i >= cfg.nthr: thr(i + 1)
    npre = cfg.npre
    def vload(i):
        if i % 4 == 0: e(f"s_xor_b32 s13, s10, {(i//4)*4096}")
        r = VB + 4*i
        e(f"buffer_load_dwordx4 v[{r}:{r+3}], v2, s[36:39], s13 offen offset:{(i%4)*1024} nt")
    for i in range(npre):
        vload(i)
        if i < npre - 1: thr(17 + i)
    e(f"s_mov_b32 s15, {cfg.spin:#x}")
    e("s_mov_b32 s8, 0x05040100")
    e("s_mov_b32 s9, 0x07060302")
    e("s_mov_b32 s14, 0x3e0293ee                  ; 128^-0.5 * log2(e)")
    lds_spin("tq", L_FLAG+4, 1, 4, 6, 1)
    e(f"ds_read_b128 v[{QB}:{QB+3}], v2 offset:{L_Q}")
    e(f"s_waitcnt vmcnt({npre}) lgkmcnt(0)")
    c("S: one MFMA per K load (4 keys x 4 quarter rows against 4 heads x 4 quarters of q), diagonal gathered with DPP")
    D = lambda l: DT if l == 0 else KB + 4*(l-1)
    def red12(l):
        tb = (l >> 1) & 3; t2 = tb ^ 1
        dpp("v_add_f32", D(l)+tb, D(l)+(tb^2), D(l)+tb, "row_ror:8")
        dpp("v_add_f32", D(l)+t2, D(l)+(t2^2), D(l)+t2, "row_ror:8")
    def red3(l):
        tb = (l >> 1) & 3; t2 = tb ^ 1
        dpp("v_add_f32", RB + (l >> 3)*2 + (l & 1), D(l)+t2, D(l)+tb, f"row_ror:{4*((tb-t2)&3)}", 1 << tb)
    LAG = 4
    masks = [f"s_mov_b32 s{48+k}, {0x000f000f << (4*(k >> 1)):#010x}" for k in range(8)]
    for l in range(16 + LAG + 1):
        if l < 16:
            a = KB + 4*l
            e(f"v_mfma_f32_16x16x32_bf16 v[{D(l)}:{D(l)+3}], v[{a}:{a+3}], v[{QB}:{QB+3}], 0")
            if l < LAG: e(masks[2*l]); e(masks[2*l+1])
        if 0 <= l - LAG < 16: red12(l - LAG)
        if 0 <= l - LAG - 1 < 16: red3(l - LAG - 1)
        if l == 16 + LAG - 1: e("s_nop 0")
    c("softmax over the wave's 64 keys: max, exp2, sum")
    e(f"v_max3_f32 v5, v{RB}, v{RB+1}, v{RB+2}")
    e(f"v_max_f32 v5, v5, v{RB+3}")
    e("s_lshl_b32 s11, s6, 3")
    e("v_lshl_add_u32 v3, v3, 6, s11")
    dpp("v_max_f32", 5, 5, 5, "row_ror:8")
    e("s_lshl_b32 s11, s6, 11")
    e("v_add_u32 v1, s11, v2")
    dpp("v_max_f32", 5, 5, 5, "row_ror:4")
    e("v_mov_b32 v6, v5")
    e("s_nop 1")
    e("v_permlane32_swap_b32 v5, v6")
    e("v_max_f32 v5, v5, v6")
    e("v_mov_b32 v6, v5")
    e("s_nop 1")
    e("v_permlane16_swap_b32 v5, v6")
    e("v_max_f32 v5, v5, v6")
    e("v_mul_f32 v6, s14, v5")
    for i in range(4): e(f"v_fma_f32 v{RB+i}, v{RB+i}, s14, -v6")
    for i in range(4): e(f"v_exp_f32 v{RB+i}, v{RB+i}")
    e("v_mov_b32 v150, 1")
    e(f"v_add_f32 v7, v{RB}, v{RB+1}")
    e(f"v_add_f32 v5, v{RB+2}, v{RB+3}")
    e("v_add_f32 v7, v7, v5")
    e(f"v_cvt_pk_bf16_f32 v{CB}, v{RB}, v{RB+1}")
    e(f"v_cvt_pk_bf16_f32 v{CB+1}, v{RB+2}, v{RB+3}")
    PM = KB
    cm = [f"v_cndmask_b32 v{PM+16*u+4*k+k}, 0, v{CB+u}, s[{48+2*k}:{49+2*k}]" for u in range(2) for k in range(4)]
    dpp("v_add_f32", 7, 7, 7, "row_ror:8")
    e(cm[0]); e(cm[1])
    dpp("v_add_f32", 7, 7, 7, "row_ror:4")
    e("v_mov_b32 v5, v7")
    e(cm[2]); e(cm[3])
    e("v_permlane32_swap_b32 v7, v5"); e("v_add_f32 v7, v7, v5"); e("v_mov_b32 v5, v7")
    e(cm[4]); e(cm[5])
    e("v_permlane16_swap_b32 v7, v5"); e("v_add_f32 v7, v7, v5")
    e(f"ds_write_b64 v3, v[6:7] offset:{L_ML}")
    lane0([f"ds_add_u32 v4, v150 offset:{L_FLAG+12}"])
    def pm_build():
        c("P as MFMA B operand, one masked copy per column group")
        e(cm[6]); e(cm[7])
        for u in range(2):
            for q4 in range(4):
                for k in range(4):
                    if k != q4: dpp("v_mov_b32", PM+16*u+4*q4+k, PM+16*u+4*k+k, None, f"row_ror:{4*((q4-k)&3)}")
    def pair(p, issued):
        u, ip = p >> 2, p & 3
        TB = KB + 32 if u == 0 else VB
        r0 = VB + 32*u + 8*ip; r1 = r0 + 4
        def mf(j):
            a = ACC + 4*(j >> 2); b = PM + 16*u + 4*(j & 3)
            src = "0" if (u == 0 and (j & 3) == 0) else f"v[{a}:{a+3}]"
            e(f"v_mfma_f32_16x16x32_bf16 v[{a}:{a+3}], v[{TB+4*j}:{TB+4*j+3}], v[{b}:{b+3}], {src}")
        def pm(j): e(f"v_perm_b32 v{TB+4*j+ip}, v{r1+(j>>1)}, v{r0+(j>>1)}, {'s9' if j&1 else 's8'}")
        e(f"s_waitcnt vmcnt({issued - (2*p + 2)})")
        if ip == 3:
            pm(0); pm(1); pm(2); mf(0); pm(3); pm(4); mf(1); pm(5); pm(6); mf(2); pm(7); mf(3); mf(4); mf(5); mf(6); mf(7)
        else:
            for j in range(8): pm(j)
    c("remaining V loads; V is transposed pairwise with v_perm and multiplied as it lands")
    nextp = 0; built = False; depth = cfg.nthr + 1
    for i in range(npre, 16):
        thrott = i < 16 - cfg.nfree
        if thrott: e(f"s_waitcnt vmcnt({cfg.nthr})")
        vload(i)
        if i == 15: lane0([f"ds_add_u32 v4, v150 offset:{L_FLAG+8}"])
        if thrott and i >= npre + cfg.nthr:
            if not built:
                pm_build(); built = True
            elif 2*nextp + 2 <= i + 1 - depth:
                pair(nextp, i + 1); nextp += 1
                if 2*nextp + 2 <= i + 1 - depth and nextp < 3:
                    pair(nextp, i + 1); nextp += 1
    if not built: pm_build()
    for p in range(nextp, 8): pair(p, 16)
    e("s_nop 3")
    e(f"ds_write_b128 v1, v[{ACC}:{ACC+3}] offset:{L_PART}")
    e("s_nop 2")
    e(f"ds_write_b128 v1, v[{ACC+4}:{ACC+7}] offset:{L_PART+1024}")
    e("s_waitcnt lgkmcnt(0)")
    e("s_barrier")
    e("s_endpgm")

    c("================= H waves =================")
    WQ, WO, TQ, TO, XB = 8, 40, 72, 104, 136
    e("L_helper:")
    e("s_memrealtime s[98:99]")
    e("s_and_b32 s3, s6, 3                        ; hw")
    e("s_and_b32 s4, s2, 7                        ; hkv")
    e("s_lshl_b32 s96, s4, 5"); e("s_add_u32 s96, s96, s5")
    e("s_lshl_b32 s62, s96, 11")
    e("s_lshl_b32 s96, s96, 10"); e(f"s_add_u32 s96, s96, {O_WS:#x}")
    e("s_lshr_b32 s6, s5, 3")
    e("s_and_b32 s7, s5, 7")
    e("s_and_b32 s59, s6, 1")
    e("s_lshr_b32 s58, s6, 1")
    e("v_lshrrev_b32 v1, 4, v0")
    e("v_and_b32 v3, 15, v0")
    e("v_lshlrev_b32 v7, 4, v1")
    e("v_lshl_add_u32 v5, v3, 10, v7")
    e("v_lshlrev_b32 v6, 16, v1")
    e("v_lshl_add_u32 v6, v3, 3, v6               ; wq lane offset")
    e("s_lshl_b32 s63, s58, 14"); e("s_lshl_b32 s11, s59, 9"); e("s_add_u32 s63, s63, s11")
    e("s_lshl_b32 s10, s3, 7"); e("s_add_u32 s63, s63, s10"); e("s_add_u32 s10, s10, s11")
    e("s_lshl_b32 s12, s10, 12")
    e("s_lshl_b32 s11, s4, 10"); e("s_add_u32 s12, s12, s11")
    e("s_lshl_b32 s14, s7, 7"); e(f"s_xor_b32 s11, s14, {cfg.nqx << 7}"); e("s_add_u32 s12, s12, s11")
    srd_c(32, 0x8000); srd_c(36, 0x400000); srd_c(44, WS_USED); srd_c(48, 256)
    for r in range(144, 148): e(f"v_mov_b32 v{r}, -1")
    e("v_lshlrev_b32 v155, 4, v0")
    e("s_getreg_b32 s60, hwreg(HW_REG_XCC_ID, 0, 3)")
    e(f"s_mov_b32 s15, {cfg.spin:#x}")
    e("v_mov_b32 v152, 0"); e("v_mov_b32 v153, 1")
    e("v_lshlrev_b32 v156, 7, v3")
    e("s_lshl_b32 s56, s5, 2"); e("s_add_u32 s56, s56, s3")
    e("s_cmp_lt_u32 s3, 2"); e("s_cselect_b64 vcc, -1, 0")
    e("s_cmp_lg_u32 s3, 0")
    e("s_waitcnt lgkmcnt(0)")
    srd_p(32, 16); srd_p(36, 22); srd_p(44, 30); srd_p(48, 28)
    e("s_cbranch_scc1 L_noarr")
    e("s_cmp_ge_u32 s2, 8")
    e("s_cbranch_scc1 L_nolead")
    e("s_mul_i32 s98, s98, 0x9e3779b1")
    e("s_lshr_b32 s11, s98, 15"); e("s_xor_b32 s98, s98, s11")
    e("s_sub_u32 s11, s60, s2"); e("s_and_b32 s11, s11, 7"); e("s_or_b32 s11, s11, 0x100")
    e("v_mov_b32 v158, s98"); e("v_mov_b32 v159, s11"); e("v_mov_b32 v160, 0"); e("v_mov_b32 v161, 0")
    lane0(["buffer_atomic_cmpswap_x2 v[158:161], v152, s[48:51], 0 offen sc1"])
    e("L_nolead:")
    e("buffer_store_dwordx4 v[144:147], v155, s[44:47], s62 offen")
    e("buffer_store_dwordx4 v[144:147], v155, s[44:47], s62 offen offset:1024")
    e("buffer_store_dwordx4 v[144:147], v155, s[44:47], s96 offen")
    e("L_noarr:")
    e("s_lshl_b32 s11, s4, 8"); e("s_add_u32 s86, s30, s11"); e("s_addc_u32 s87, s31, 0")
    seq = [("x", 0, 0), ("x", 1, 0)] + [("wq", r, i) for r in range(2) for i in range(8)]
    pos = {x: n for n, x in enumerate(seq)}
    for n, (k, r, i) in enumerate(seq):
        if k == "wq":
            d = WQ + 16*r + 2*i
            if r or i: e(f"s_add_u32 s11, s12, {(r*32+i)*8192}")
            e(f"buffer_load_dwordx2 v[{d}:{d+1}], v6, s[36:39], {'s11' if (r or i) else 's12'} offen nt")
        else:
            e(f"buffer_load_dwordx4 v[{XB+4*r}:{XB+4*r+3}], v5, s[32:35], s63 offen offset:{64*r}")
        if n == cfg.h_thr:
            e("s_setprio 3")
            e("s_barrier")
            e("s_cmp_lg_u32 s56, 3")
            e("s_cbranch_scc1 L_nowarm")
            e(f"s_load_dword s66, s[86:87], {PR_WS:#x} glc")
            e(f"s_load_dword s67, s[86:87], {PR_WS + 0x2000:#x} glc")
            e("L_nowarm:")
        if n == cfg.race_at:
            c("which interleave class is nearer to this XCC")
            e("s_cmp_lg_u32 s56, 3")
            e("s_cbranch_scc1 L_noprobe")
            e("s_waitcnt lgkmcnt(0)")
            e("s_memtime s[80:81]")
            e("s_waitcnt lgkmcnt(0)")
            e(f"s_load_dword s66, s[86:87], {PR_WS:#x} glc")
            e("s_waitcnt lgkmcnt(0)")
            e("s_memtime s[82:83]")
            e("s_waitcnt lgkmcnt(0)")
            e(f"s_load_dword s67, s[86:87], {PR_WS + 0x2000:#x} glc")
            e("s_waitcnt lgkmcnt(0)")
            e("s_memtime s[84:85]")
            e("s_waitcnt lgkmcnt(0)")
            e("s_sub_u32 s80, s82, s80"); e("s_sub_u32 s82, s84, s82")
            e("s_cmp_gt_u32 s80, s82")
            e("s_cselect_b32 s11, 17, 16")
            e("s_lshr_b32 s99, s60, 2"); e("s_xor_b32 s11, s11, s99")
            e("v_mov_b32 v158, s11"); e("v_mov_b32 v159, 0")
            lane0(["buffer_atomic_cmpswap v[158:159], v152, s[48:51], 0 offen offset:128 sc1"])
            e("L_noprobe:")
        if n >= cfg.h_thr and n < len(seq) - 1:
            if n > cfg.rd_at:
                e(f"s_waitcnt vmcnt({cfg.h_thr + cfg.hx})"); e(f"s_cbranch_vccnz L_hx{n}"); e(f"s_waitcnt vmcnt({cfg.h_thr})"); e(f"L_hx{n}:")
            else: e(f"s_waitcnt vmcnt({cfg.h_thr})")
        if n == cfg.rd_at:
            e("s_cmp_lg_u32 s3, 0")
            e("s_cbranch_scc1 L_nord")
            e("buffer_load_dwordx2 v[158:159], v152, s[48:51], 0 offen sc1")
            e("L_nord:")
            c("first touch of the pages used later (V, wo, out); the values are not used")
            e("s_cmp_lg_u32 s3, 1")
            e("s_cbranch_scc1 L_notlb")
            e("s_lshl_b32 s11, s2, 19"); e(f"s_add_u32 s11, s11, {1536*256}")
            e("v_mov_b32 v158, s11")
            e("s_lshl_b32 s11, s4, 19")
            e("v_mov_b32 v159, s11")
            lane0(["global_load_dword v154, v158, s[20:21] nt", "global_load_dword v154, v159, s[24:25] nt", "global_load_dword v154, v152, s[26:27] sc1"])
            e("L_notlb:")
        if n == cfg.chk_at:
            c("launch tag known: raise the arrival flag (the sentinel stores are older and complete)")
            e("s_cmp_lg_u32 s3, 0")
            e("s_cbranch_scc1 L_nochk")
            e(f"s_waitcnt vmcnt({cfg.chk_at - cfg.rd_at})")
            e("s_branch L_gc")
            e("L_gc_again:")
            e("buffer_load_dwordx2 v[158:159], v152, s[48:51], 0 offen sc1")
            e("s_waitcnt vmcnt(0)")
            e("L_gc:")
            e("v_readfirstlane_b32 s11, v159")
            e("s_cmp_lg_u32 s11, 0")
            e("s_cbranch_scc1 L_gc_done")
            retry("L_gc_again")
            e("L_gc_done:")
            e("s_and_b32 s99, s11, 7")
            e("s_add_u32 s11, s11, s2"); e("s_and_b32 s11, s11, 7")
            e("s_lshr_b32 s97, s62, 4"); e(f"s_add_u32 s97, s97, {A_WS:#x}")
            e("s_cmp_eq_u32 s11, s60")
            e("s_cselect_b32 s57, 1, 0")
            e("s_mov_b64 exec, 1")
            e("s_cbranch_scc1 L_fl")
            e("v_xor_b32 v159, 1, v158")
            e("buffer_store_dword v159, v152, s[44:47], s97 offen sc1")
            e("s_branch L_fg")
            e("L_fl:")
            e("buffer_store_dword v158, v152, s[44:47], s97 offen")
            e("L_fg:")
            e("s_mov_b64 exec, -1")
            e("s_andn2_b32 s97, s97, 0x7ff")
            e("L_nochk:")
    e("s_cmp_lg_u32 s3, 0")
    e("s_cbranch_scc1 L_nofr")
    e("buffer_load_dword v159, v156, s[44:47], s97 offen sc1")
    e("L_nofr:")
    e("s_mov_b32 s8, 0x05040100")
    e("s_mov_b32 s9, 0x07060302")
    srd_p(52, 26); srd_c(52, 0x8000)
    srd_p(40, 24); srd_c(40, 0x400000)
    c("wo rows follow the order in which o leaves the merge")
    e("v_and_b32 v4, 1, v1"); e("v_lshlrev_b32 v4, 8, v4")
    e("v_lshrrev_b32 v2, 1, v1"); e("v_add_u32 v4, v4, v2")
    e("v_lshlrev_b32 v4, 10, v4"); e("v_lshl_add_u32 v4, v3, 3, v4")
    e("s_lshl_b32 s13, s4, 19"); e("s_add_u32 s13, s13, s14")
    e("s_lshl_b32 s11, s3, 15"); e("s_add_u32 s13, s13, s11")
    e("s_lshl_b32 s11, s59, 12"); e("s_add_u32 s13, s13, s11")
    e("s_andn2_b32 s96, s96, 0x3fff")
    e("s_lshl_b32 s10, s10, 4"); e("s_add_u32 s10, s10, s96")
    e("s_andn2_b32 s63, s62, 0x7fff")
    e("s_lshl_b32 s11, s3, 13"); e("s_add_u32 s63, s63, s11")
    e("s_lshl_b32 s11, s59, 10"); e("s_add_u32 s63, s63, s11")
    e(f"s_xor_b32 s11, s14, {cfg.nqx << 7}"); e("s_add_u32 s63, s63, s11")
    e("v_lshlrev_b32 v162, 11, v1"); e("v_lshl_add_u32 v162, v3, 3, v162")
    e("s_lshl_b32 s11, s3, 12"); e("s_add_u32 s96, s96, s11")
    e("s_and_b32 s11, s5, 15"); e("s_lshl_b32 s11, s11, 4"); e("s_add_u32 s96, s96, s11")
    e("v_lshlrev_b32 v160, 6, v0")
    e("s_lshl_b32 s12, s6, 3"); e("s_add_u32 s12, s12, s4"); e("s_lshl_b32 s12, s12, 10"); e("s_add_u32 s12, s12, s14")
    c("partial slots: address bit 12: b0, 13: class, 14-16: b2..4, 17-18: XCC&3, 19: b1")
    def jbits(dst, src):
        e(f"s_andn2_b32 {dst}, {src}, 2"); e(f"s_lshl_b32 {dst}, {dst}, 12")
        e(f"s_and_b32 s11, {src}, 2"); e("s_lshl_b32 s11, s11, 18"); e(f"s_add_u32 {dst}, {dst}, s11"); e(f"s_add_u32 {dst}, {dst}, {P_WS:#x}")
    e("s_lshl_b32 s56, s58, 4"); e("s_lshr_b32 s11, s3, 1"); e("s_lshl_b32 s11, s11, 3"); e("s_add_u32 s56, s56, s11")
    e("s_add_u32 s56, s56, s7")
    jbits("s14", "s56")
    e("s_lshl_b32 s11, s4, 1"); e("s_add_u32 s61, s11, s58"); e("s_add_u32 s11, s11, s59"); e("s_lshl_b32 s11, s11, 8"); e("s_add_u32 s14, s14, s11")
    e("s_lshl_b32 s61, s61, 8")
    e("s_mov_b32 s58, 0x11111111"); e("s_mov_b32 s59, 0x11111111")
    e("v_mul_u32_u24 v149, 288, v1")
    e("v_lshl_add_u32 v149, v3, 4, v149")
    e("s_mul_i32 s11, s3, 5120")
    e("v_add_u32 v149, s11, v149")
    e("v_bfe_u32 v163, v0, 2, 2")
    e("v_mul_u32_u24 v150, 288, v163")
    e("v_add_u32 v150, v150, v7")
    e("v_and_b32 v151, 3, v0")
    e("v_lshl_add_u32 v150, v151, 2, v150")
    e("s_lshl_b32 s11, s3, 6"); e(f"s_add_u32 s11, s11, {L_RED}")
    e("v_add_u32 v150, s11, v150")

    def transpose(W, T, remf, thr_, lo=0, hi=8):
        for r in range(2):
            for ip in range(4):
                if not (lo <= 4*r + ip < hi): continue
                rem = remf(r, 2*ip + 1)
                if rem <= thr_: e(f"s_waitcnt vmcnt({rem})")
                r0 = W + 16*r + 4*ip; r1 = r0 + 2
                for w in range(2):
                    e(f"v_perm_b32 v{T+16*r+4*(2*w)+ip}, v{r1+w}, v{r0+w}, s8")
                    e(f"v_perm_b32 v{T+16*r+4*(2*w+1)+ip}, v{r1+w}, v{r0+w}, s9")
    AC = 8
    def pmf(T, n):
        r, j = n >> 2, n & 3
        a = AC + 4*j
        src = "0" if r == 0 else f"v[{a}:{a+3}]"
        t = T + 16*r + 4*j
        e(f"v_mfma_f32_16x16x32_bf16 v[{a}:{a+3}], v[{t}:{t+3}], v[{XB+4*r}:{XB+4*r+3}], {src}")

    c("q tile")
    transpose(WQ, TQ, lambda r, i: len(seq) - 1 - pos[("wq", r, i)], cfg.h_thr + cfg.hx)
    for n in range(8): pmf(TQ, n)
    e("s_nop 4")
    for j in range(4): e(f"ds_write_b128 v149, v[{AC+4*j}:{AC+4*j+3}] offset:{L_RED + 1280*j}")
    e("s_cmp_lg_u32 s3, 0")
    e("s_cbranch_scc1 L_nov")
    e("s_cmp_eq_u32 s57, 0")
    e("s_cbranch_scc0 L_ar")
    e("s_branch L_ar_done")
    e("L_ar_again:")
    e("buffer_load_dword v159, v156, s[44:47], s97 offen sc1")
    e("L_ar:")
    e("s_waitcnt vmcnt(0)")
    e("v_xor_b32 v159, v159, v158")
    e("v_cmp_lt_u32 vcc, 1, v159")
    e("s_cbranch_vccz L_ar_ok")
    retry("L_ar_again")
    e("L_ar_ok:")
    e("v_cmp_ne_u32 vcc, 0, v159")
    e("s_nop 0")
    e("s_cmp_eq_u64 vcc, 0")
    e("s_cselect_b32 s57, 1, 0")
    e("L_ar_done:")
    e("s_lshl_b32 s11, s99, 1"); e("s_or_b32 s11, s11, s57")
    e("v_mov_b32 v159, s11")
    e(f"ds_write_b64 v152, v[158:159] offset:{L_FLAG+16}")
    e("L_nov:")
    lane0([f"ds_add_u32 v152, v153 offset:{L_FLAG}"])
    e("v_mov_b32 v148, 0xff")
    lds_spin("hs", L_FLAG, 4, 152, 154, 0)
    e(f"ds_read_b64 v[158:159], v152 offset:{L_FLAG+16}")
    for w in range(4):
        for jp in range(2):
            e(f"ds_read2st64_b32 v[{24+4*w+2*jp}:{25+4*w+2*jp}], v150 offset0:{5*(4*w+2*jp)} offset1:{5*(4*w+2*jp+1)}")
    for w in range(1, 4):
        e(f"s_waitcnt lgkmcnt({6-2*w})")
        e(f"v_pk_add_f32 v[24:25], v[24:25], v[{24+4*w}:{25+4*w}]")
        e(f"v_pk_add_f32 v[26:27], v[26:27], v[{26+4*w}:{27+4*w}]")
    e("v_mov_b32 v156, v158")
    e("v_readfirstlane_b32 s101, v158")
    e("v_readfirstlane_b32 s57, v159")
    e("v_cvt_pk_bf16_f32 v164, v24, v25")
    e("v_cvt_pk_bf16_f32 v165, v26, v27")
    e("v_min_u32 v164, -2, v164")
    e("v_min_u32 v165, -2, v165")
    e("s_and_b32 s98, s101, 0xff"); e("s_bfe_u32 s99, s101, 0x80008"); e("s_bfe_u32 s100, s101, 0x80010"); e("s_lshr_b32 s101, s101, 24")
    dpp("v_mov_b32", 166, 164, None, "quad_perm:[1,1,3,3]")
    dpp("v_mov_b32", 167, 165, None, "quad_perm:[1,1,3,3]")
    e("s_mov_b32 exec_lo, 0x55555555"); e("s_mov_b32 exec_hi, 0x55555555")
    e("s_lshr_b32 s60, s57, 1"); e("s_and_b32 s57, s57, 1")
    e("s_cbranch_scc0 L_qslow")
    e("buffer_store_dwordx4 v[164:167], v162, s[44:47], s63 offen")
    e("s_mov_b64 exec, -1")
    e("L_qg:")
    def woload(n):
        r, i = n >> 3, n & 7
        d = WO + 16*r + 2*i
        rows = (i >> 2)*128 + (i & 3)*8
        if rows: e(f"s_add_u32 s11, s13, {rows*1024}")
        e(f"buffer_load_dwordx2 v[{d}:{d+1}], v4, s[40:43], {'s11' if rows else 's13'} offen offset:{r*2048} nt")
    for n in range(cfg.nearly): woload(n)
    e("s_cmp_lg_u32 s3, 0")
    e("s_cbranch_scc1 L_noq")
    c("collect the two halves of the own q, add them, hand q to the T waves in MFMA operand order")
    e("v_lshl_add_u32 v157, v3, 6, v7")
    e("L_qp:")
    e("buffer_load_dwordx4 v[8:11], v155, s[44:47], s62 offen sc1")
    e("buffer_load_dwordx4 v[12:15], v155, s[44:47], s62 offen offset:1024 sc1")
    e("buffer_load_dword v24, v152, s[48:51], 0 offen offset:128 sc1")
    e("s_waitcnt vmcnt(0)")
    e("v_add_u32 v25, -1, v24")
    e("v_max3_u32 v16, v8, v9, v10")
    e("v_max3_u32 v17, v11, v12, v13")
    e("v_max3_u32 v16, v16, v14, v15")
    e("v_max3_u32 v16, v16, v17, v25")
    e("v_cmp_eq_u32 vcc, -1, v16")
    e("s_cbranch_vccz L_qp_done")
    retry("L_qp")
    e("L_qp_done:")
    for k in range(4):
        e(f"v_lshlrev_b32 v16, 16, v{8+k}"); e(f"v_lshlrev_b32 v18, 16, v{12+k}")
        e(f"v_and_b32 v17, 0xffff0000, v{8+k}"); e(f"v_and_b32 v19, 0xffff0000, v{12+k}")
        e("v_pk_add_f32 v[16:17], v[16:17], v[18:19]")
        e(f"v_cvt_pk_bf16_f32 v{20+k}, v16, v17")
    e(f"ds_write_b128 v157, v[20:23] offset:{L_Q}")
    e(f"ds_write_b32 v152, v24 offset:{L_FLAG+24}")
    e(f"ds_write_b32 v152, v153 offset:{L_FLAG+4}")
    e("L_noq:")
    e("s_setprio 0")
    e("s_lshl_b32 s11, s3, 9")
    e("v_lshl_add_u32 v6, v0, 3, s11")
    e("v_bfe_u32 v7, v0, 1, 2")
    e("v_lshlrev_b32 v7, 6, v7")
    e("v_mul_u32_u24 v149, 272, v3"); e("v_lshl_add_u32 v149, v1, 4, v149"); e("s_mul_i32 s11, s3, 4352"); e("v_add_u32 v149, s11, v149")
    e("v_mul_u32_u24 v150, 272, v1"); e("v_lshl_add_u32 v150, v3, 4, v150"); e("s_mul_i32 s11, s3, 1088"); e("v_add_u32 v150, s11, v150")
    e("v_lshlrev_b32 v158, 5, v151"); e("v_lshl_add_u32 v158, v1, 3, v158"); e("v_lshl_add_u32 v158, v163, 1, v158")
    jbits("s62", "s5")
    e("s_waitcnt vmcnt(0)")
    transpose(WO, TO, lambda r, i: 99, 0, 0, cfg.nearly // 2)
    c("merge weights exp2(m_w - m) / l, once every T wave has its (m, l)")
    lds_spin("w0", L_FLAG+12, 8, 152, 154, 2)
    for k in range(4): e(f"ds_read_b128 v[{8+4*k}:{11+4*k}], v7 offset:{L_ML+16*k}")
    e(f"ds_read_b32 v27, v152 offset:{L_FLAG+24}")
    e("s_and_b32 s11, s3, 1"); e("s_lshl_b32 s11, s11, 2"); e("s_add_u32 s11, s11, s60")
    e("v_add_u32 v28, s11, v1")
    e("v_and_b32 v161, 3, v28"); e("v_lshlrev_b32 v161, 17, v161"); e("v_lshl_add_u32 v161, v3, 4, v161")
    e("v_lshrrev_b32 v28, 2, v28")
    e("s_add_u32 s60, s60, s4")
    e("s_and_b32 s11, s60, 3"); e("s_lshl_b32 s11, s11, 17"); e("s_add_u32 s62, s62, s11")
    e("s_waitcnt lgkmcnt(0)")
    e("v_readfirstlane_b32 s11, v27")
    e("v_xor_b32 v28, v28, v27"); e("v_and_b32 v28, 1, v28"); e("v_lshl_add_u32 v161, v28, 13, v161")
    e("s_lshr_b32 s60, s60, 2"); e("s_xor_b32 s11, s11, s60"); e("s_and_b32 s11, s11, 1"); e("s_lshl_b32 s11, s11, 13"); e("s_add_u32 s62, s62, s11")
    e("v_max3_f32 v24, v8, v10, v12")
    e("v_max3_f32 v25, v14, v16, v18")
    e("v_max3_f32 v24, v24, v20, v22")
    e("v_max_f32 v24, v24, v25")
    for w in range(8): e(f"v_sub_f32 v{8+2*w}, v{8+2*w}, v24")
    for w in range(8): e(f"v_exp_f32 v{8+2*w}, v{8+2*w}")
    e("v_mul_f32 v25, v8, v9")
    e("v_mul_f32 v26, v10, v11")
    for w in range(2, 8): e(f"v_fmac_f32 v{25+(w&1)}, v{8+2*w}, v{9+2*w}")
    e("v_add_f32 v25, v25, v26")
    e("v_rcp_f32 v25, v25")
    e("s_nop 0")
    for w in range(8): e(f"v_mul_f32 v{8+2*w}, v{8+2*w}, v25")
    c("the rest of wo queues behind the last V loads")
    lds_spin("w1", L_FLAG+8, 8, 152, 154, 1)
    for n in range(cfg.nearly, 16): woload(n)
    e("s_cmp_eq_u32 s57, 1")
    e("s_barrier")
    c("merge and publish o")
    for w in range(8): e(f"ds_read_b64 v[{24+2*w}:{25+2*w}], v6 offset:{L_PART+2048*w}")
    e("s_waitcnt lgkmcnt(6)")
    e("v_pk_mul_f32 v[72:73], v[24:25], v[8:9] op_sel_hi:[1,0]")
    e("v_pk_mul_f32 v[74:75], v[26:27], v[10:11] op_sel_hi:[1,0]")
    for w in range(2, 8):
        if w % 2 == 0: e(f"s_waitcnt lgkmcnt({6-w})")
        d = 72 + 2*(w & 1)
        e(f"v_pk_fma_f32 v[{d}:{d+1}], v[{24+2*w}:{25+2*w}], v[{8+2*w}:{9+2*w}], v[{d}:{d+1}] op_sel_hi:[1,0,1]")
    e("v_pk_add_f32 v[72:73], v[72:73], v[74:75]")
    e("v_cvt_pk_bf16_f32 v72, v72, v73")
    e("v_min_u32 v72, -2, v72")
    e("s_nop 1")
    dpp("v_mov_b32", 73, 72, None, "quad_perm:[1,1,1,1]")
    dpp("v_mov_b32", 74, 72, None, "quad_perm:[2,2,2,2]")
    dpp("v_mov_b32", 75, 72, None, "quad_perm:[3,3,3,3]")
    e("s_mov_b64 exec, s[58:59]")
    e("s_cbranch_scc0 L_oslow")
    e("buffer_store_dwordx4 v[72:75], v160, s[44:47], s96 offen")
    e("s_mov_b64 exec, -1")
    e("L_og:")
    def opoll():
        e(f"buffer_load_dwordx4 v[{XB}:{XB+3}], v155, s[44:47], s10 offen sc1")
        e(f"buffer_load_dwordx4 v[{XB+4}:{XB+7}], v155, s[44:47], s10 offen offset:1024 sc1")
    lo = cfg.nearly // 2; mid = max(lo, cfg.opat)
    transpose(WO, TO, lambda r, i: 15 - (8*r + i) + 1, 99, lo, mid)
    opoll()
    transpose(WO, TO, lambda r, i: 15 - (8*r + i) + 3, 99, mid, 8)
    e("s_branch L_opw")
    c("output tile: wait for the 16 o vectors of the group")
    e("L_op:")
    opoll()
    e("L_opw:")
    e("s_waitcnt vmcnt(1)")
    pmf(TO, 0)
    e(f"v_max3_u32 v40, v{XB}, v{XB+1}, v{XB+2}")
    pmf(TO, 1)
    e("s_waitcnt vmcnt(0)")
    e(f"v_max3_u32 v41, v{XB+3}, v{XB+4}, v{XB+5}")
    e(f"v_max3_u32 v40, v40, v{XB+6}, v{XB+7}")
    pmf(TO, 2)
    e("v_max_u32 v40, v40, v41")
    e("v_cmp_eq_u32 vcc, -1, v40")
    pmf(TO, 3)
    e("s_cbranch_vccnz L_op_retry")
    for n in range(4, 8): pmf(TO, n)
    e("s_nop 4")
    for j in range(4): e(f"ds_write_b128 v149, v[{AC+4*j}:{AC+4*j+3}] offset:{L_RED + 64*j}")
    e("s_waitcnt lgkmcnt(0)")
    e("s_barrier")
    for w in range(4): e(f"ds_read_b128 v[{24+4*w}:{27+4*w}], v150 offset:{L_RED + 4352*w}")
    for w in range(1, 4):
        e(f"s_waitcnt lgkmcnt({3-w})")
        e(f"v_pk_add_f32 v[24:25], v[24:25], v[{24+4*w}:{25+4*w}]")
        e(f"v_pk_add_f32 v[26:27], v[26:27], v[{26+4*w}:{27+4*w}]")
    for k in range(4): e(f"v_bfi_b32 v{24+k}, v148, s{98+k}, v{24+k}")
    e("buffer_store_dwordx4 v[24:27], v161, s[44:47], s14 offen sc1")
    e("s_cmp_lg_u32 s3, 0")
    e("s_cbranch_scc1 L_end")
    e("s_waitcnt vmcnt(0)")
    c("sum the 16 partials of one output row piece")
    e("L_fp:")
    for k in range(4): e(f"buffer_load_dwordx4 v[{8+4*k}:{11+4*k}], v155, s[44:47], s62 offen offset:{1024*k} sc1")
    for k in range(4):
        r = 8 + 4*k
        e(f"s_waitcnt vmcnt({3-k})")
        for cc in range(4): e(f"v_xor_b32 v{r+cc}, s{98+cc}, v{r+cc}")
        if k == 0: e(f"v_or3_b32 v40, v{r}, v{r+1}, v{r+2}"); e(f"v_or_b32 v40, v40, v{r+3}")
        else:
            e(f"v_or3_b32 v40, v40, v{r}, v{r+1}"); e(f"v_or3_b32 v40, v40, v{r+2}, v{r+3}")
            e(f"v_pk_add_f32 v[8:9], v[8:9], v[{r}:{r+1}]"); e(f"v_pk_add_f32 v[10:11], v[10:11], v[{r+2}:{r+3}]")
    e("v_and_b32 v40, v40, v148")
    e("v_cmp_ne_u32 vcc, 0, v40")
    e("v_permlane32_swap_b32 v8, v10")
    e("v_permlane32_swap_b32 v9, v11")
    e("v_pk_add_f32 v[8:9], v[8:9], v[10:11]")
    e("s_cbranch_vccnz L_fp_retry")
    e("s_nop 0")
    e("v_permlane16_swap_b32 v8, v9")
    e("v_add_f32 v8, v8, v9")
    e("v_cvt_pk_bf16_f32 v8, v8, v8")
    e("buffer_store_short v8, v158, s[52:55], s12 offen")
    e("L_end:")
    e("s_endpgm")
    e("L_op_retry:")
    retry("L_op")
    e("L_fp_retry:")
    retry("L_fp")
    c("hand-offs of a group that is spread over several XCCs")
    def slow(name, store, fbase, back):
        e(f"L_{name}slow:")
        for x in store: e(x)
        e(f"s_add_u32 s56, s61, {fbase:#x}")
        e("s_and_b32 s11, s5, 15"); e("s_lshl_b32 s11, s11, 2"); e("s_add_u32 s11, s11, s3"); e("s_lshl_b32 s11, s11, 2")
        e("s_add_u32 s11, s11, s56")
        e("s_waitcnt vmcnt(0)")
        lane0(["buffer_store_dword v156, v152, s[44:47], s11 offen sc1"])
        e("v_lshlrev_b32 v157, 2, v0")
        e(f"L_{name}sp:")
        e("s_sleep 4")
        e("buffer_load_dword v154, v157, s[44:47], s56 offen sc1")
        e("s_waitcnt vmcnt(0)")
        e("v_cmp_ne_u32 vcc, v154, v156")
        e(f"s_cbranch_vccz {back}")
        retry(f"L_{name}sp")
    slow("o", [f"s_add_u32 s96, s96, {SLOW:#x}", f"s_add_u32 s10, s10, {SLOW:#x}",
               "buffer_store_dwordx4 v[72:75], v160, s[44:47], s96 offen sc1"], F_WS, "L_og")
    slow("q", [f"s_add_u32 s63, s63, {SLOW:#x}", f"s_add_u32 s62, s62, {SLOW:#x}",
               "buffer_store_dwordx4 v[164:167], v162, s[44:47], s63 offen sc1"], F_WS + 0x1000, "L_qg")

    body = "\n".join(x if (x.endswith(":") and not x.startswith(";")) else "    " + x for x in L)
    return (HDR + f"; @launch grid=(256,1,1) block=(768,1,1) lds={LDS_BYTES}\n" + DOC
        + f""".amdgcn_target "amdgcn-amd-amdhsa--gfx950"
.text
.globl {KN}_kernel
.p2align 8
.type {KN}_kernel,@function
{KN}_kernel:
""" + body + f"""
.section .rodata,"a"
.p2align 6
.amdhsa_kernel {KN}_kernel
  .amdhsa_next_free_vgpr 168
  .amdhsa_next_free_sgpr 102
  .amdhsa_accum_offset 168
  .amdhsa_group_segment_fixed_size 0
  .amdhsa_kernarg_size 64
  .amdhsa_user_sgpr_count 2
  .amdhsa_user_sgpr_kernarg_segment_ptr 1
  .amdhsa_system_sgpr_workgroup_id_x 1
.end_amdhsa_kernel
""")

if __name__ == "__main__":
    cfg = Cfg()
    for kv in sys.argv[2:]:
        k, v = kv.split("="); assert hasattr(cfg, k), k
        setattr(cfg, k, int(v, 0))
    txt = gen(cfg)
    sys.path.insert(0, os.path.dirname(__file__))
    import hazcheck
    assert hazcheck.check(txt) == 0
    open(sys.argv[1], "w").write(txt)
```
